```python
import torch

def _softmax(x, axis=-1):
    return torch.softmax(x, dim=axis)
def _gelu(x):
    return torch.nn.functional.gelu(x, approximate="tanh")
def _silu(x):
    return torch.nn.functional.silu(x)
def _sigmoid(x):
    return torch.sigmoid(x)
def _layernorm(x, axis=-1, eps=1e-5):
    m = x.mean(dim=axis, keepdim=True)
    v = x.var(dim=axis, keepdim=True, unbiased=False)
    return (x - m) / torch.sqrt(v + eps)
def _scatter_add(tgt, idx, src, axis=0):
    return tgt.clone().index_add_(axis, idx, src)
def _segment_sum(src, seg, n):
    out = torch.zeros((n,) + src.shape[1:], dtype=src.dtype)
    return out.index_add_(0, seg, src)
def _pad(x, pw):
    flat = tuple(v for pair in reversed(pw) for v in pair)
    return torch.nn.functional.pad(x, flat)

kernel_name = 'sequential_preLN__ssm_conv_s4d__dense_activation_silu__prompt'

def setup_inputs():

    _w = (lambda a: (lambda t: t.to(torch.bfloat16) if t.is_floating_point() else t)(torch.as_tensor(a)))
    def _A_setup():
        Bsz, L, D, N = 1, 2048, 512, 128
        return {
            "u": _w((lambda *s: torch.randn(*s, dtype=torch.bfloat16) * 0.05)(Bsz, L, D)),
            "log_A_real": _w((lambda *s: torch.randn(*s, dtype=torch.bfloat16) * 6.4)(D, N) * 0.5),
            "A_imag": _w((lambda *s: torch.randn(*s, dtype=torch.bfloat16) * 0.05)(D, N) * 3.14),
            "C_real": _w((lambda *s: torch.randn(*s, dtype=torch.bfloat16) * 0.05)(D, N) / N ** 0.5),
            "C_imag": _w((lambda *s: torch.randn(*s, dtype=torch.bfloat16) * 0.05)(D, N) / N ** 0.5),
            "log_dt": _w((lambda *s: torch.randn(*s, dtype=torch.bfloat16) * 0.05)(D) * 0.5 - 4.0),
            "D_skip": _w((lambda *s: torch.randn(*s, dtype=torch.bfloat16) * 0.05)(D)),
        }
    _A_in = _A_setup()

    def _B_setup():
        B, S, D, F = 1, 2048, 512, 1376
        return {
            "x": _w((lambda *s: torch.randn(*s, dtype=torch.bfloat16) * 0.05)(B, S, D)),
            "w1": _w((lambda *s: torch.randn(*s, dtype=torch.bfloat16) * 0.8)(D, F) * (D ** -0.5)),
            "w2": _w((lambda *s: torch.randn(*s, dtype=torch.bfloat16) * 0.2)(F, D) * (F ** -0.5)),
        }
    _B_in = _B_setup()

    return {
        "A_u": _A_in["u"],
        "A_log_A_real": _A_in["log_A_real"],
        "A_A_imag": _A_in["A_imag"],
        "A_C_real": _A_in["C_real"],
        "A_C_imag": _A_in["C_imag"],
        "A_log_dt": _A_in["log_dt"],
        "A_D_skip": _A_in["D_skip"],
        "B_x": _B_in["x"],
        "B_w1": _B_in["w1"],
        "B_w2": _B_in["w2"],
    }

def reference(A_u, A_log_A_real, A_A_imag, A_C_real, A_C_imag, A_log_dt, A_D_skip, B_x, B_w1, B_w2):
    def _A_ref(u, log_A_real, A_imag, C_real, C_imag, log_dt, D_skip):
        L = u.shape[1]
        dt = torch.exp(log_dt)
        A = -torch.exp(log_A_real) + 1j * A_imag
        C = (C_real + 1j * C_imag) * dt[:, None]
        pos = (lambda x, dt: x.to(dt))(torch.arange(L), log_dt.dtype)
        P = torch.exp((A * dt[:, None])[:, :, None] * pos[None, None, :])
        K = 2.0 * torch.einsum("dn,dnl->dl", C, P).real
        L2 = 2 * L
        u_t = (lambda x, *d: x.permute(*d))(u, 0, 2, 1)
        Kf = (lambda x, *a, **k: torch.fft.rfft(x.float(), *a, **k))(K, L2)
        Uf = (lambda x, *a, **k: torch.fft.rfft(x.float(), *a, **k))(u_t, L2)
        y = (lambda x, *a, **k: torch.fft.irfft(x, *a, **k).to(torch.bfloat16))(Uf * Kf[None, :, :], L2)[:, :, :L]
        y = (lambda x, *d: x.permute(*d))(y, 0, 2, 1)
        return y + u * D_skip[None, None, :]

    def _B_ref(x, w1, w2):
        h = torch.einsum("bsd,df->bsf", x, w1)
        h = _silu(h)
        out = torch.einsum("bsf,fd->bsd", h, w2)
        return out

    x = A_u
    h = x + _A_ref(_layernorm(x, axis=-1), A_log_A_real, A_A_imag, A_C_real, A_C_imag, A_log_dt, A_D_skip)
    h2 = h + _B_ref(_layernorm(h, axis=-1), B_w1, B_w2)
    return h2
```

```python
class A:
    def __init__(self):
        self.L = []
        self.nlab = 0
    def __call__(self, s):
        for line in s.strip('\n').split('\n'):
            self.L.append(line.strip() if line.strip().endswith(':') else '    ' + line.strip())
    def label(self, base='L'):
        self.nlab += 1
        return f'{base}_{self.nlab}'
    def text(self):
        return '\n'.join(self.L) + '\n'

def header(launch_lines):
    return '\n'.join(launch_lines) + '\n.amdgcn_target "amdgcn-amd-amdhsa--gfx950"\n.text\n'

def kstart(name):
    return f'.globl {name}\n.p2align 8\n.type {name},@function\n{name}:\n'

def kdesc(name, vgpr, sgpr=102, accum=None, karg=104):
    accum = accum if accum is not None else ((min(vgpr,256) + 3) // 4) * 4
    return f'''.section .rodata,"a"
.p2align 6
.amdhsa_kernel {name}
  .amdhsa_next_free_vgpr {vgpr}
  .amdhsa_next_free_sgpr {sgpr}
  .amdhsa_accum_offset {accum}
  .amdhsa_group_segment_fixed_size 0
  .amdhsa_kernarg_size {karg}
  .amdhsa_user_sgpr_count 2
  .amdhsa_user_sgpr_kernarg_segment_ptr 1
  .amdhsa_system_sgpr_workgroup_id_x 1
.end_amdhsa_kernel
.text
'''
```

```python
import re
RX = re.compile(r'(?<![\w.])([vas])(?:(\d+)|\[(\d+):(\d+)\])(?![\w])')
def regs(op):
    out = []
    for m in RX.finditer(op):
        k = m.group(1)
        if m.group(2) is not None: out.append((k, int(m.group(2))))
        else: out += [(k, i) for i in range(int(m.group(3)), int(m.group(4)) + 1)]
    if re.search(r'\bvcc\b', op): out += [('s', 'vcc')]
    if re.search(r'\bexec\b', op): out += [('s', 'exec')]
    if re.search(r'\bm0\b', op): out += [('s', 'm0')]
    return out
TRANS = ('v_exp_f32', 'v_log_f32', 'v_rcp_f32', 'v_rsq_f32', 'v_sqrt_f32', 'v_sin_f32', 'v_cos_f32')
class I:
    def __init__(s, text):
        s.text = text
        t = text.split(';')[0].strip()
        s.label = t.endswith(':')
        s.mn = t.split()[0] if t and not s.label else ''
        rest = t[len(s.mn):].strip() if s.mn else ''
        ops = [o.strip() for o in re.split(r',(?![^\[]*\])', rest)] if rest else []
        s.mods = ''
        if ops:
            last = ops[-1].split(None, 1)
            if len(last) > 1 and not ops[-1].startswith('hwreg') :
                ops[-1] = last[0]; s.mods = last[1]
        s.ops = ops
        mn = s.mn
        s.kind = ('mfma' if mn.startswith('v_mfma') else 'valu' if mn.startswith('v_') else 'ds' if mn.startswith('ds_')
                  else 'vm' if mn.startswith(('global_', 'buffer_')) else 'smem' if mn.startswith(('s_load', 's_memtime', 's_memrealtime')) else 'salu' if mn.startswith('s_') else '')
        R = [regs(o) for o in ops]
        s.d, s.u = [], []
        s.srcC = []; s.srcAB = []; s.stdata = []
        if s.kind == 'mfma':
            s.d = R[0]; s.srcAB = R[1] + R[2]; s.srcC = R[3]; s.u = s.srcAB + s.srcC
        elif s.kind == 'valu':
            if 'swap' in mn: s.d = R[0] + R[1]; s.u = R[0] + R[1]
            elif mn.startswith(('v_add_co', 'v_sub_co', 'v_addc_co', 'v_div_scale')): s.d = R[0] + R[1]; s.u = sum(R[2:], [])
            elif mn == 'v_nop': pass
            else:
                s.d = R[0]; s.u = sum(R[1:], [])
                if mn.startswith(('v_fmac', 'v_dot2c', 'v_writelane', 'v_mac')) or '_dpp' in mn or 'row_' in s.mods or 'quad_perm' in s.mods: s.u = s.u + R[0]
                if mn.startswith('v_cndmask') and len(ops) == 3: s.u = s.u + [('s', 'vcc')]
        elif s.kind == 'ds':
            if mn.startswith('ds_read') or mn.startswith(('ds_bpermute', 'ds_permute', 'ds_swizzle')): s.d = R[0]; s.u = sum(R[1:], [])
            else: s.u = sum(R, [])
            if 'addtid' in mn: s.u = s.u + [('s', 'm0')]
        elif s.kind == 'vm':
            lds = re.search(r'\blds\b', s.mods) is not None
            if 'load' in mn and not lds: s.d = R[0]; s.u = sum(R[1:], [])
            else:
                s.u = sum(R, [])
                if lds: s.u = s.u + [('s', 'm0')]
                if 'store' in mn: s.stdata = R[1] if mn.startswith('global') else R[0]
        elif s.kind == 'smem':
            s.d = R[0]; s.u = sum(R[1:], [])
        elif s.kind == 'salu':
            if mn.startswith(('s_cmp', 's_waitcnt', 's_barrier', 's_nop', 's_branch', 's_cbranch', 's_endpgm', 's_sleep', 's_setprio', 's_bitcmp')): s.u = sum(R, [])
            else:
                s.d = R[0] if R else []; s.u = sum(R[1:], [])
                if 'saveexec' in mn: s.d = s.d + [('s', 'exec')]
        s.dpp = '_dpp' in mn or 'row_' in s.mods or 'quad_perm' in s.mods
        s.trans = mn.startswith(TRANS)
        s.dot = mn.startswith('v_dot')
    def states(s):
        if s.label or not s.mn or s.mn.startswith('.'): return 0
        if s.mn == 's_nop': return int(s.ops[0], 0) + 1
        return 1

def parse(text):
    return [I(l.strip()) for l in text.split('\n') if l.strip() and not l.strip().startswith(';')]

def auto_wait(ins):
    out = []; vq = []; lq = []
    for x in ins:
        if x.mn == 's_waitcnt':
            t = x.text
            m = re.search(r'vmcnt\((\d+)\)', t)
            if m: vq = vq[len(vq) - int(m.group(1)):] if int(m.group(1)) < len(vq) else vq
            if m and int(m.group(1)) == 0: vq = []
            m = re.search(r'lgkmcnt\((\d+)\)', t)
            if m:
                n = int(m.group(1))
                if n == 0: lq = []
                elif n < len(lq) and not any(e[1] for e in lq): lq = lq[len(lq) - n:]
            out.append(x); continue
        touch = set(x.u) | set(x.d)
        nv = None
        for i in range(len(vq) - 1, -1, -1):
            if vq[i] & touch: nv = len(vq) - 1 - i; break
        nl = None
        for i in range(len(lq) - 1, -1, -1):
            if lq[i][0] & touch:
                nl = len(lq) - 1 - i
                if any(e[1] for e in lq): nl = 0
                break
        if nl is not None and x.kind == 'ds' and not any(e[1] for e in lq):
            if not any(e[0] & set(x.u) for e in lq): nl = None
        if nv is not None and x.kind == 'vm' and not any(e & set(x.u) for e in vq): nv = None
        w = []
        if nv is not None:
            nv = min(nv, 63); w.append(f'vmcnt({nv})'); vq = vq[len(vq) - nv:] if nv else []
        if nl is not None:
            nl = min(nl, 15); w.append(f'lgkmcnt({nl})'); lq = lq[len(lq) - nl:] if nl else []
        if w: out.append(I('s_waitcnt ' + ' '.join(w)))
        out.append(x)
        if x.kind == 'vm': vq.append(set(x.d))
        elif x.kind == 'ds': lq.append((set(x.d), False))
        elif x.kind == 'smem': lq.append((set(x.d), True))
    return out

def need(p, c):
    n = 0
    pd, cu, cd = set(p.d), set(c.u), set(c.d)
    pv = {r for r in pd if r[0] in 'va'}; ps = {r for r in pd if r[0] == 's'}
    if p.kind == 'valu':
        if c.kind == 'mfma' and pv & cu: n = max(n, 3 if p.dot else 2)
        if c.kind == 'valu':
            if p.trans and not c.trans and pv & cu: n = max(n, 1)
            if p.trans and c.trans and pv & cu: n = max(n, 1)
            if ('permlane' in c.mn or c.dpp) and pv & cu: n = max(n, 2)
            if c.mn.startswith(('v_readlane', 'v_readfirstlane')) and pv & cu: n = max(n, 1)
            if ps & cu: n = max(n, 4 if c.mn.startswith(('v_readlane', 'v_writelane')) else 2)
            if p.dot and (pv & (cu | cd)):
                same_c = c.mn == p.mn and ((c.mn.startswith('v_dot2c') and not (pv & set(regs(c.ops[1]) + regs(c.ops[2])))) or (not c.mn.startswith('v_dot2c') and not (pv & set(regs(c.ops[1]) + regs(c.ops[2])))))
                if not same_c: n = max(n, 3)
            if ('op_sel' in p.mods and not p.mn.startswith('v_pk') and pv & (cu | cd)): n = max(n, 1)
        if c.kind in ('vm', 'ds') and p.dot and pv & cu: n = max(n, 3)
        if c.kind == 'vm' and ps & cu: n = max(n, 5)
        if c.kind in ('salu', 'smem') and ps & cu: n = max(n, 1)
    if p.kind == 'mfma':
        long_ = '32x32' in p.mn
        if c.kind == 'mfma':
            if pd & set(c.srcAB): n = max(n, 12 if long_ else 8)
            if pd & set(c.srcC) and not (p.d == c.srcC and ('32x32' in c.mn) == long_): n = max(n, 10 if long_ else 6)
            if pd & cd and not (pd & set(c.srcC)): n = max(n, 10 if long_ else 6)
        elif c.kind in ('valu', 'vm', 'ds'):
            if pd & (cu | cd): n = max(n, 12 if long_ else 8)
        if c.kind == 'valu' and set(p.srcC) & cd: n = max(n, 7 if long_ else 3)
    if p.kind == 'vm' and len(p.stdata) >= 3 and set(p.stdata) & cd:
        n = max(n, 2 if c.kind in ('valu', 'mfma') else 1)
    if p.kind == 'salu' and ('s', 'm0') in pd and ('s', 'm0') in cu and c.kind in ('ds', 'vm'): n = max(n, 1)
    return n

def hazards(ins):
    out = []
    for x in ins:
        if x.mn and not x.label:
            dist = 0; pad = 0
            for p in reversed(out):
                if dist >= 20: break
                if p.mn and not p.label:
                    k = need(p, x)
                    if k > dist: pad = max(pad, k - dist)
                dist += p.states()
            while pad > 0:
                k = min(pad, 16); out.append(I(f's_nop {k-1}')); pad -= k
        out.append(x)
    return out

def finish(text):
    ins = hazards(auto_wait(parse(text)))
    return '\n'.join((i.text if i.label else '    ' + i.text) for i in ins) + '\n'
```

```python
import sys
from asmlib import A, header, kstart, kdesc
from asmpass import finish
NAME = 'sequential_preLN__ssm_conv_s4d__dense_activation_silu__prompt'
WS_STATS = 64 << 10; WS_FL2 = 128 << 10; WS_FL3 = 160 << 10; WS_DBG = 512 << 10; WS_HT = 1 << 20; WS_H1 = 4 << 20
H1_LT = 48 * 1024; H1_RB = 4 * H1_LT
ROW = 544; KOP_C = 64 * ROW
L_TAB = 2 * KOP_C; TAB_C = 6176
L_COPY = L_TAB + 2 * TAB_C; CPS = 4160; COPY_C = 4 * CPS
L_U = L_COPY + 2 * COPY_C; U_C = 4576
L_X = L_U + 2 * U_C
L_END = L_X + 8192
L_TR = 65536; L_ST2 = L_TR + 16384
LOG2E = 0x3fb8aa3b; INV2PI = 0x3e22f983
sW, sP, sRB, sJ, sC, sH = 's3', 's50', 's51', 's52', 's53', 's54'
pX, pLA, pAI, pCR, pCI, pDT, pDS = 's[4:5]', 's[6:7]', 's[8:9]', 's[10:11]', 's[12:13]', 's[14:15]', 's[16:17]'
pOUT, pWS = 's[24:25]', 's[28:29]'
rW1, rW2, rHT, rH1 = 's[32:35]', 's[36:39]', 's[40:43]', 's[44:47]'
sTAG = 's55'; sDT = 's56'; sDK = 's57'
def q(b, n=4, k='v'): return f'{k}[{b}:{b+n-1}]'

def prologue(a, end):
    a(f's_cmp_ge_u32 s2, 256\ns_cbranch_scc1 {end}')
    a('s_load_dwordx16 s[4:19], s[0:1], 0\ns_load_dwordx8 s[20:27], s[0:1], 64\ns_load_dwordx2 s[28:29], s[0:1], 96')
    a('v_and_b32 v1, 63, v0\nv_lshrrev_b32 v2, 6, v0\nv_readfirstlane_b32 s3, v2')
    a('s_and_b32 s48, s2, 7\ns_lshr_b32 s49, s2, 3\ns_lshl_b32 s50, s48, 5\ns_add_u32 s50, s50, s49')
    a('s_lshr_b32 s51, s49, 3\ns_lshl_b32 s52, s48, 2\ns_add_u32 s51, s51, s52\ns_and_b32 s52, s49, 7')
    a('s_lshr_b32 s53, s3, 1\ns_and_b32 s54, s3, 1')
    a('s_waitcnt lgkmcnt(0)')

def srds(a):
    a('s_mov_b32 s32, s20\ns_mov_b32 s33, s21\ns_mov_b32 s34, %d\ns_mov_b32 s35, 0x20000' % (512 * 2752))
    a('s_mov_b32 s36, s22\ns_mov_b32 s37, s23\ns_mov_b32 s38, %d\ns_mov_b32 s39, 0x20000' % (1376 * 1024))
    a(f's_add_u32 s40, s28, {WS_HT}\ns_addc_u32 s41, s29, 0\ns_mov_b32 s42, {2<<20}\ns_mov_b32 s43, 0x20000')
    a(f's_add_u32 s44, s28, {WS_H1}\ns_addc_u32 s45, s29, 0\ns_mov_b32 s46, {32*H1_RB}\ns_mov_b32 s47, 0x20000')

def p1_loads(a):
    a('s_lshl_b32 s60, s2, 13\ns_lshl_b32 s61, s3, 11\ns_add_u32 s60, s60, s61')
    a('v_lshl_add_u32 v2, v1, 4, s60')
    a(f'global_load_dwordx4 v[4:7], v2, {pX}\nglobal_load_dwordx4 v[8:11], v2, {pX} offset:1024')

def p1_stats(a, sc):
    a('s_mov_b32 s60, 0x3f803f80')
    a('v_dot2_f32_bf16 v24, v4, s60, 0\nv_dot2_f32_bf16 v25, v8, s60, 0\nv_dot2_f32_bf16 v26, v4, v4, 0\nv_dot2_f32_bf16 v27, v8, v8, 0')
    for i in range(1, 4):
        a(f'v_dot2_f32_bf16 v24, v{4+i}, s60, v24\nv_dot2_f32_bf16 v25, v{8+i}, s60, v25')
        a(f'v_dot2_f32_bf16 v26, v{4+i}, v{4+i}, v26\nv_dot2_f32_bf16 v27, v{8+i}, v{8+i}, v27')
    a('v_permlane32_swap_b32 v24, v25\nv_permlane32_swap_b32 v26, v27')
    a('v_add_f32 v24, v24, v25\nv_add_f32 v26, v26, v27')
    a('v_permlane16_swap_b32 v24, v26\nv_add_f32 v24, v24, v26')
    for r in (8, 4, 2, 1):
        a(f'v_add_f32_dpp v24, v24, v24 row_ror:{r} row_mask:0xf bank_mask:0xf')
    a('v_mul_f32 v24, 0x3b000000, v24')
    a('v_mov_b32 v26, v24\nv_permlane16_swap_b32 v24, v26')
    a('v_fma_f32 v26, -v24, v24, v26\nv_max_f32 v26, 0, v26')
    a('v_cvt_pk_bf16_f32 v26, v26, v26\nv_lshlrev_b32 v26, 16, v26\nv_add_f32 v26, 0x3727c5ac, v26')
    a('v_cvt_pk_bf16_f32 v26, v26, v26\nv_lshlrev_b32 v26, 16, v26\nv_sqrt_f32 v26, v26')
    a('v_cvt_pk_bf16_f32 v26, v26, v26\nv_lshlrev_b32 v26, 16, v26\nv_rcp_f32 v28, v26')
    a('v_mov_b32 v25, v24\nv_mov_b32 v29, v28')
    a('v_permlane32_swap_b32 v24, v25\nv_permlane32_swap_b32 v28, v29')
    a(f'v_cvt_pk_bf16_f32 v30, v24, v25\nv_mov_b32 v31, {sTAG}')
    a(f's_lshl_b32 s60, s2, 7\ns_lshl_b32 s61, s3, 4\ns_add_u32 s60, s60, s61\ns_add_u32 s60, s60, {WS_STATS}\nv_mov_b32 v2, s60')
    a(f's_mov_b64 exec, 1\nglobal_store_dwordx4 v2, v[28:31], {pWS} {sc}\ns_mov_b64 exec, -1')

GA = 64
def p2_loads(a):
    a(f's_lshl_b32 s60, {sP}, 9\nv_lshl_add_u32 v2, v0, 1, s60')
    for i, p in enumerate((pLA, pAI, pCR, pCI)): a(f'global_load_ushort v{12+i}, v2, {p}')
    a(f's_lshl_b32 s60, {sP}, 2\ns_load_dword {sDT}, {pDT}, s60\ns_load_dword {sDK}, {pDS}, s60')
def p2_gather(a):
    a(f's_lshl_b32 s60, {sP}, 2\nv_lshl_add_u32 v2, v0, 13, s60\nv_add_u32 v3, 4096, v2')
    for e in range(8): a(f'global_load_dword v{16+e}, v{2+(e>>2)}, {pX} offset:{1024*(e&3)}')

def p2_consts(a):
    a(f's_mul_i32 s62, {sC}, {TAB_C}\ns_add_u32 s62, s62, {L_TAB + 16}\ns_sub_u32 s63, s62, {4*0x3f80}')
    a('v_and_b32 v2, 127, v0\nv_lshlrev_b32 v3, 3, v2\nv_sub_u32 v3, 2047, v3\nv_cvt_f32_u32 v3, v3')
    a('s_mov_b32 s64, 4')
    import struct
    def fl(x): return '0x%08x' % struct.unpack('<I', struct.pack('<f', x))[0]
    for ps in range(2):
        for i in range(0, 12, 2):
            a(f'v_subrev_f32 v24, {fl(1024*ps + i)}, v3\nv_subrev_f32 v25, {fl(1024*ps + i + 1)}, v3\nv_cvt_pk_bf16_f32 v24, v24, v25')
            a(f'v_mov_b32 v26, s63') if (ps == 0 and i == 0) else None
            a(f'v_mad_u32_u16 v{GA+11*ps+i}, v24, 4, v26')
            if i + 1 < 11: a(f'v_mad_u32_u16 v{GA+11*ps+i+1}, v24, 4, v26 op_sel:[1,0,0,0]')
    a('v_cmp_eq_u32 vcc, 127, v2\ns_sub_u32 s60, s62, 4\ns_sub_u32 s61, s62, 8\nv_mov_b32 v24, s60\nv_mov_b32 v25, s61')
    a(f'v_cndmask_b32 v{GA+11+7}, v{GA+11+7}, v24, vcc')
    for i in (8, 9, 10): a(f'v_cndmask_b32 v{GA+11+i}, v{GA+11+i}, v25, vcc')
    a('v_and_b32 v27, 15, v1\nv_lshrrev_b32 v28, 4, v1')
    a('v_lshlrev_b32 v29, 4, v27\nv_lshl_add_u32 v29, v28, 2, v29\nv_cvt_f32_u32 v29, v29')
    a('v_add_f32 v30, 1.0, v29\nv_cvt_pk_bf16_f32 v30, v29, v30\nv_mad_u32_u16 v86, v30, 4, v26\nv_mad_u32_u16 v87, v30, 4, v26 op_sel:[1,0,0,0]')
    a('v_add_f32 v30, 2.0, v29\nv_add_f32 v31, 1.0, v30\nv_cvt_pk_bf16_f32 v30, v30, v31\nv_mad_u32_u16 v88, v30, 4, v26\nv_mad_u32_u16 v89, v30, 4, v26 op_sel:[1,0,0,0]')
    a('v_cmp_eq_u32 vcc, 0, v1\nv_cndmask_b32 v86, v86, v24, vcc')
    a(f's_add_u32 s60, s62, {4*(0x4480-0x3f80)}\nv_lshlrev_b32 v90, 8, v28\nv_lshl_add_u32 v90, v27, 3, v90\nv_add_u32 v90, s60, v90')
    a(f'v_lshlrev_b32 v30, 5, v27\nv_lshl_add_u32 v30, v28, 4, v30\nv_add_u32 v30, {4*(0x4380-0x3f80)}, v30')
    a(f'v_lshlrev_b32 v31, 4, v27\nv_lshl_add_u32 v31, v28, 8, v31\nv_add_u32 v31, {4*(0x4400-0x3f80) - 512}, v31')
    a('v_cmp_gt_u32 vcc, 2, v28\nv_cndmask_b32 v91, v31, v30, vcc\nv_add_u32 v91, s62, v91')
    a(f's_mul_i32 s60, {sC}, {KOP_C}\nv_mul_u32_u24 v92, {ROW}, v27\nv_lshl_add_u32 v92, v28, 4, v92\nv_add_u32 v92, s60, v92')
    a(f's_mul_i32 s60, {sC}, {COPY_C}\ns_add_u32 s60, s60, {L_COPY}\nv_lshl_add_u32 v93, v2, 4, s60')
    a('v_mov_b32 v32, 0\nv_mov_b32 v33, 0\nv_mov_b32 v34, 0\nv_mov_b32 v35, 0')
    a(f'v_lshrrev_b32 v30, 1, v2\nv_mul_u32_u24 v30, {CPS}, v30\nv_and_b32 v31, 1, v2\nv_lshl_add_u32 v30, v31, 4, v30\ns_add_u32 s60, s60, 4096\nv_add_u32 v30, s60, v30')
    a(f's_mul_i32 s61, {sC}, {U_C}\ns_add_u32 s61, s61, {L_U - 128}\nv_lshl_add_u32 v31, v2, 4, s61')
    a('v_cmp_gt_u32 vcc, 8, v2\nv_cndmask_b32 v30, v31, v30, vcc')
    a('s_sub_u32 s60, s62, 16\nv_mov_b32 v31, s60\nv_cmp_eq_u32 vcc, 38, v2\nv_cndmask_b32 v30, v30, v31, vcc')
    a('v_cmp_gt_u32 vcc, 39, v2\ns_and_saveexec_b64 s[60:61], vcc\nds_write_b128 v30, v[32:35]\ns_mov_b64 exec, s[60:61]')
    a(f's_mul_i32 s60, {sC}, {COPY_C}\ns_lshl_b32 s61, {sH}, 8\ns_sub_u32 s60, s60, s61\ns_add_u32 s60, s60, {L_COPY + 4104 - 192 - 512*7}')
    a(f'v_and_b32 v30, 3, v1\nv_mul_u32_u24 v136, {CPS}, v30\nv_bfe_u32 v30, v1, 2, 2\nv_lshl_add_u32 v30, v28, 1, v30\nv_lshlrev_b32 v30, 3, v30')
    a('v_sub_u32 v136, v136, v30\nv_add_u32 v136, s60, v136')
    a(f's_mul_i32 s60, {sC}, {U_C}\ns_sub_u32 s64, s60, s61\ns_add_u32 s64, s64, {L_U + 496 - 192}')
    a('v_lshlrev_b32 v137, 5, v27\nv_lshlrev_b32 v30, 4, v28\nv_sub_u32 v137, v137, v30\nv_add_u32 v137, s64, v137')
    a(f's_lshl_b32 s61, {sH}, 11\ns_add_u32 s60, s60, s61\ns_add_u32 s60, s60, {L_U + 480 - 32}')
    a(f's_lshl_b32 s64, {sC}, 12\ns_add_u32 s64, s64, s61\ns_add_u32 s64, s64, {L_X}')
    a('v_mov_b32 v30, s60\nv_mov_b32 v31, s64\nv_cmp_gt_u32 vcc, 2, v28\nv_cndmask_b32 v30, v30, v31, vcc')
    a('v_lshl_add_u32 v30, v27, 5, v30\nv_lshl_add_u32 v138, v28, 4, v30')
    a(f's_xor_b32 s60, {sW}, 1\ns_lshl_b32 s60, s60, 12\nv_lshl_add_u32 v139, v1, 4, s60\nv_lshlrev_b32 v140, 12, v0\nv_lshrrev_b32 v140, 6, v140\nv_and_b32 v140, 0x3000, v140\nv_lshl_add_u32 v140, v1, 4, v140')
    a('v_and_b32 v30, 1, v28\nv_lshlrev_b32 v30, 9, v30\nv_lshl_add_u32 v30, v27, 5, v30\nv_lshrrev_b32 v31, 1, v28\nv_lshl_add_u32 v141, v31, 4, v30')

def cmul(a, d, x, y):
    a(f'v_pk_mul_f32 v[62:63], {q(x,2)}, {q(y,2)} op_sel:[1,1] op_sel_hi:[1,0] neg_lo:[0,1]')
    a(f'v_pk_fma_f32 {q(d,2)}, {q(x,2)}, {q(y,2)}, v[62:63] op_sel:[0,0,0] op_sel_hi:[0,1,1]')

def kgen(a, fill):
    a(f's_lshl_b32 s60, {sC}, 4\ns_lshr_b32 s61, {sDT}, s60\ns_lshl_b32 s61, s61, 16\ns_lshr_b32 {sDK}, {sDK}, s60\ns_and_b32 {sDK}, {sDK}, 0xffff')
    a(f'v_mov_b32 v24, {LOG2E:#x}\nv_mul_f32 v25, s61, v24\nv_exp_f32 v25, v25')
    a('v_lshlrev_b32 v12, 16, v12\nv_mul_f32 v12, v12, v24\nv_exp_f32 v12, v12')
    a('v_lshlrev_b32 v13, 16, v13\nv_lshlrev_b32 v14, 16, v14\nv_lshlrev_b32 v15, 16, v15')
    a('v_cvt_pk_bf16_f32 v25, v25, v12\nv_and_b32 v12, 0xffff0000, v25\nv_lshlrev_b32 v25, 16, v25')
    a('v_mul_f32 v12, v12, v25\nv_mul_f32 v13, v13, v25')
    a(f'v_mul_f32 v12, {LOG2E | 0x80000000:#x}, v12\nv_mul_f32 v13, {INV2PI:#x}, v13')
    a('v_mul_f32 v40, v14, v25\nv_mul_f32 v41, v15, v25\nv_add_f32 v40, v40, v40\nv_add_f32 v41, v41, v41')
    a(f's_mul_i32 s60, {sC}, {KOP_C}\ns_lshl_b32 s61, {sH}, 8\ns_add_u32 s60, s60, s61\ns_mov_b32 m0, s60')
    for d, mul, cj in ((24, None, 0), (26, '0x41800000', 1), (28, '0x43800000', 0)):
        if mul: a(f'v_mul_f32 v30, {mul}, v12\nv_mul_f32 v31, {mul}, v13')
        else: a('v_mov_b32 v30, v12\nv_mov_b32 v31, v13')
        a(f'v_exp_f32 v30, v30\nv_fract_f32 v31, v31\nv_cos_f32 v{d}, v31\nv_sin_f32 v{d+1}, v31')
        a(f'v_mul_f32 v{d}, v{d}, v30\nv_mul_f32 v{d+1}, {"-" if cj else ""}v{d+1}, v30')
    tmp = [94, 95, 96, 97]; ti = [0]
    def put(src, row):
        t = tmp[ti[0] & 3]; ti[0] += 1
        a(f'v_cvt_pk_bf16_f32 v{t}, v{src}, v{src+1}\nds_write_addtid_b32 v{t} offset:{row*ROW}')
    a(f'v_mov_b32 v98, 0x3f80\nds_write_addtid_b32 v98 offset:{48*ROW}')
    put(40, 0); put(26, 49)
    pr = 40; qr = 26
    for p in range(1, 16):
        pd = 40 + p if p % 2 == 0 else 56
        cmul(a, pd, pr, 24); pr = pd
        if p <= 14:
            qd = 58 + 2 * (p & 1)
            cmul(a, qd, qr, 26); qr = qd
        put(pd, p)
        if p <= 14: put(qd, 49 + p)
        fill()
    cmul(a, 30, 28, 28); cmul(a, 32, 30, 28); cmul(a, 34, 30, 30); fill()
    cmul(a, 36, 34, 28); cmul(a, 38, 34, 30); cmul(a, 24, 34, 32); cmul(a, 26, 34, 34); fill()
    jobs = [(40 + 2*i, 28, 16 + i) for i in range(8)] + [(40 + 4*i, 30, 24 + i) for i in range(4)] + [(40 + 4*i, 32, 28 + i) for i in range(4)]
    jobs += [(40 + 8*i, z, 32 + 2*qq + i) for qq, z in enumerate((34, 36, 38, 24)) for i in range(2)] + [(40, 26, 40)]
    for k, (x, z, row) in enumerate(jobs):
        d = 58 + 2 * (k & 1)
        cmul(a, d, x, z); put(d, row)
        if k % 2 == 1: fill()
    a('s_waitcnt lgkmcnt(0)\ns_barrier')
    l1, l2 = a.label('KH1'), a.label('KJ')
    def tile(t, acc, withB):
        for k in range(8):
            if withB: a(f'ds_read_b128 {q(24+4*k)}, v92 offset:{48*ROW + 64*k}')
            a(f'ds_read_b128 {q(100+4*k)}, v92 offset:{16*t*ROW + 64*k}')
        for k in range(8):
            a(f'v_mfma_f32_16x16x32_bf16 {q(acc)}, {q(100+4*k)}, {q(24+4*k)}, {"0" if k == 0 else q(acc)}')
    a(f's_cmp_eq_u32 {sH}, 1\ns_cbranch_scc1 {l1}')
    tile(0, 56, True); tile(2, 60, False)
    for r in range(4): a(f'ds_write_b32 v{86+r}, v{56+r}')
    a('ds_write_b64 v90, v[60:61]\nds_write_b64 v90, v[62:63] offset:128')
    a(f's_waitcnt lgkmcnt(0)\ns_branch {l2}\n{l1}:')
    tile(1, 56, True)
    a('ds_write_b128 v91, v[56:59]')
    a(f's_waitcnt lgkmcnt(0)\n{l2}:\ns_barrier')
    for ps in range(2):
        for i in range(11): a(f'ds_read_b32 v{24+12*ps+i}, v{GA+11*ps+i}')
        fill()
    for ps in range(2):
        for s in range(4):
            d = 100 + 16 * ps + 4 * s
            for k in range(4):
                b = 24 + 12 * ps + 3 - s + 2 * k
                a(f'v_cvt_pk_bf16_f32 v{d+k}, v{b}, v{b+1}')
            a(f'ds_write_b128 v93, {q(d)} offset:{s*CPS + 2048*ps}')
            fill()

def x_prep(a):
    a('s_mov_b32 s60, 0x05040100\ns_mov_b32 s61, 0x07060302')
    for k in range(4): a(f'v_perm_b32 v{56+k}, v{17+2*k}, v{16+2*k}, s60\nv_perm_b32 v{60+k}, v{17+2*k}, v{16+2*k}, s61')
    a(f'v_lshlrev_b32 v2, 4, v0\nds_write_b128 v2, v[56:59] offset:{L_X}' .replace(f'offset:{L_X}', 'offset:0').replace('v_lshlrev_b32 v2, 4, v0', f'v_lshlrev_b32 v2, 4, v0\nv_add_u32 v2, {L_X}, v2'))
    a('ds_write_b128 v2, v[60:63] offset:4096')
    for e in range(8): a(f'v_lshlrev_b32 v{88+e}, 16, v{16+e}\nv_and_b32 v{96+e}, 0xffff0000, v{16+e}')
    for i in range(32): a(f'v_mov_b32 v{24+i}, 0')
    a('v_and_b32 v120, 15, v1\nv_bfe_u32 v121, v1, 4, 1\nv_lshlrev_b32 v121, 3, v121\nv_sub_u32 v120, v120, v121')
    a(f'v_mov_b32 v121, {sDK}\nv_mov_b32 v122, 0x3f80\nv_cmp_gt_u32 vcc, 32, v1\nv_cndmask_b32 v121, v121, v122, vcc')
    a('v_and_b32 v122, 1, v120\nv_lshlrev_b32 v122, 4, v122\nv_lshlrev_b32 v121, v122, v121\nv_ashrrev_i32 v120, 1, v120')
    for k in range(4): a(f'v_cmp_eq_u32 vcc, {k}, v120\nv_cndmask_b32 v{132+k}, 0, v121, vcc')

def stats_load(a, sc):
    a(f'v_lshlrev_b32 v3, 7, v0\nv_add_u32 v3, {WS_STATS}, v3')
    for k in range(4): a(f'global_load_dwordx4 {q(104+4*k)}, v3, {pWS} offset:{16*k} {sc}')

def u_make(a):
    for k in range(4):
        g = 104 + 4 * k
        a(f'v_lshlrev_b32 v{g+3}, 16, v{g+2}\nv_and_b32 v{g+2}, 0xffff0000, v{g+2}')
        a(f'v_mul_f32 v{g+3}, -v{g+3}, v{g}\nv_mul_f32 v{g+2}, -v{g+2}, v{g+1}')
        for c in range(2):
            a(f'v_fma_f32 v{88+8*c+2*k}, v{88+8*c+2*k}, v{g}, v{g+3}\nv_fma_f32 v{89+8*c+2*k}, v{89+8*c+2*k}, v{g+1}, v{g+2}')
        for c in range(2):
            a(f'v_cvt_pk_bf16_f32 v{56+4*c+k}, v{88+8*c+2*k}, v{89+8*c+2*k}')
    a(f'ds_write_b128 v2, v[56:59] offset:0\nds_write_b128 v2, v[60:63] offset:{U_C}'.replace('v2,', 'v3,').replace('ds_write_b128 v3, v[56:59]', f'v_add_u32 v3, {L_U + 480 - L_X}, v2\nds_write_b128 v3, v[56:59]'.replace(str(L_U + 480 - L_X), hex((L_U + 480 - L_X) & 0xffffffff))))
    a('s_waitcnt lgkmcnt(0)\ns_barrier')

def conv(a, fill):
    ACC = 24; BS = (56, 88); AR = 120; NA = 3
    def rdA(rho, gam):
        slot = AR + 4 * ((rho * 8 + gam) % NA); off = 512 * (7 - gam) + 64 * (3 - rho)
        a(f'ds_read_b64 {q(slot,2)}, v136 offset:{off}\nds_read_b64 {q(slot+2,2)}, v136 offset:{off+8}')
    def rdB(rho, dl):
        a(f'ds_read_b128 {q(BS[rho&1]+4*dl)}, v137 offset:{512*dl + 64*(3-rho)}')
    rdA(0, 0)
    for dl in range(8): rdB(0, dl)
    for i in range(4): a(f'ds_read_b128 {q(BS[1]+4*i)}, v138 offset:{512*i}')
    rdA(0, 1)
    first = True
    for rho in range(4):
        for gam in range(8):
            nxt = rho * 8 + gam + 2
            slot = AR + 4 * ((rho * 8 + gam) % NA)
            for n in range(gam, 8):
                a(f'v_mfma_f32_16x16x32_bf16 {q(ACC+4*n)}, {q(slot)}, {q(BS[rho&1]+4*(n-gam))}, {q(ACC+4*n)}')
                if n == gam:
                    if nxt < 32: rdA(nxt // 8, nxt % 8)
                if n == gam + 1 and rho < 3 and not (rho == 0 and gam < 1):
                    for dl in {1: (0, 1), 2: (2, 3), 3: (4,), 4: (5,), 5: (6,), 6: (7,), 0: ()}[gam] : rdB(rho + 1, dl)
                if (n - gam) % 3 == 2: fill()
            if first:
                first = False
                l1, l2 = a.label('CB'), a.label('CJ')
                a(f's_waitcnt lgkmcnt(0)\ns_cmp_eq_u32 {sH}, 1\ns_cbranch_scc1 {l1}')
                for i in range(4): a(f'v_mfma_f32_16x16x32_bf16 {q(ACC+4*i)}, v[132:135], {q(BS[1]+4*i)}, {q(ACC+4*i)}')
                a(f's_branch {l2}\n{l1}:')
                for i in range(4): a(f'v_mfma_f32_16x16x32_bf16 {q(ACC+16+4*i)}, v[132:135], {q(BS[1]+4*i)}, {q(ACC+16+4*i)}')
                a(f'{l2}:')

def conv_epi(a, sc):
    ACC = 24
    l1, l2, l3, l4 = a.label('E1'), a.label('E2'), a.label('E3'), a.label('E4')
    a(f's_nop 7\ns_cmp_eq_u32 {sH}, 1\ns_cbranch_scc1 {l1}')
    for i in range(4): a(f'ds_write_b128 v139, {q(ACC+16+4*i)} offset:{1024*i}')
    a(f's_branch {l2}\n{l1}:')
    for i in range(4): a(f'ds_write_b128 v139, {q(ACC+4*i)} offset:{1024*i}')
    a(f'{l2}:\ns_waitcnt lgkmcnt(0)\ns_barrier')
    for i in range(4): a(f'ds_read_b128 {q(56+4*i)}, v140 offset:{1024*i}')
    a(f's_lshl_b32 s60, {sP}, 13\ns_lshl_b32 s61, {sW}, 11\ns_add_u32 s60, s60, s61')
    a(f's_waitcnt lgkmcnt(0)\ns_cbranch_scc1 {l3}'.replace(f's_cbranch_scc1 {l3}', f's_cmp_eq_u32 {sH}, 1\ns_cbranch_scc1 {l3}'))
    for i in range(16): a(f'v_add_f32 v{56+i}, v{56+i}, v{ACC+i}')
    a(f's_branch {l4}\n{l3}:')
    for i in range(16): a(f'v_add_f32 v{56+i}, v{56+i}, v{ACC+16+i}')
    a(f'{l4}:')
    for i in range(8): a(f'v_cvt_pk_bf16_f32 v{72+i}, v{56+2*i}, v{57+2*i}')
    for k in range(2):
        a(f'v_permlane16_swap_b32 v{72+4*k}, v{74+4*k}\nv_permlane16_swap_b32 v{73+4*k}, v{75+4*k}')
        a(f'buffer_store_dwordx4 {q(72+4*k)}, v141, {rHT}, s60 offen offset:{1024*k} {sc}')

def w1_addr(a, r0):
    a(f's_mul_i32 s60, {sJ}, 384\ns_lshl_b32 s61, {sW}, 6\ns_add_u32 s61, s61, s60')
    a(f's_add_u32 s60, s60, 256\ns_min_u32 s60, s60, 2688\ns_lshl_b32 s64, {sW}, 5\ns_add_u32 s60, s60, s64\ns_sub_u32 s60, s60, 64\ns_sub_u32 s60, s60, s61')
    for n in range(3):
        r = r0 + n
        a(f'v_add_u32 v30, {64*n}, v1\nv_mul_u32_u24 v31, 171, v30\nv_lshrrev_b32 v31, 10, v31\nv_mul_u32_u24 v{r}, 6, v31\nv_sub_u32 v30, v30, v{r}')
        a(f'v_mul_u32_u24 v{r}, 2752, v31\nv_lshl_add_u32 v{r}, v30, 4, v{r}\nv_add_u32 v{r}, s61, v{r}\nv_add_u32 v31, s60, v{r}')
        a(f'v_cmp_lt_u32 vcc, 3, v30\nv_cndmask_b32 v{r}, v{r}, v31, vcc')
def w1_loads(r0):
    L = []
    for ks in range(16):
        for n in range(3):
            L.append((f's_mov_b32 s65, {ks*88064}\n' if n == 0 else '') + f'buffer_load_dwordx4 {q(12*ks+4*n,4,"a")}, v{r0+n}, {rW1}, s65 offen')
    return L
def w1_transpose(a):
    a(f's_lshl_b32 s60, {sW}, 12\ns_add_u32 s60, s60, {L_TR}\nv_lshl_add_u32 v2, v1, 4, s60')
    a('v_lshrrev_b32 v3, 2, v1\nv_mul_u32_u24 v3, 96, v3\nv_and_b32 v4, 3, v1\nv_lshl_add_u32 v3, v4, 3, v3\nv_add_u32 v3, s60, v3')
    for i in range(4): a(f'v_mov_b32 v{4+i}, 0x3f803f80')
    def cs(ks):
        for T in range(3): a(f'v_mfma_f32_16x16x32_bf16 {q(24+4*T)}, v[4:7], {q(12*ks+4*T,4,"a")}, {"0" if ks == 0 else q(24+4*T)}')
    for ks in range(16):
        for n in range(3): a(f'ds_write_b128 v2, {q(12*ks+4*n,4,"a")} offset:{1024*n}')
        for T in range(3):
            a(f'ds_read_b64_tr_b16 {q(12*ks+4*T,2,"a")}, v3 offset:{32*T}\nds_read_b64_tr_b16 {q(12*ks+4*T+2,2,"a")}, v3 offset:{32*T+1536}')
        if ks: cs(ks - 1)
    cs(15)
    a('v_cmp_gt_u32 vcc, 16, v1')
    for T in range(3):
        s = 24 + 4 * T; d = 36 + 4 * T
        a(f'v_cvt_pk_bf16_f32 v{s+1}, v{s}, v{s}\nv_lshlrev_b32 v{s+1}, 16, v{s+1}\nv_sub_f32 v{s+2}, v{s}, v{s+1}\nv_cvt_pk_bf16_f32 v{s+1}, v{s+1}, v{s+2}')
        a(f'v_cndmask_b32 v{d}, 0, v{s+1}, vcc\nv_mov_b32 v{d+1}, 0\nv_mov_b32 v{d+2}, 0\nv_mov_b32 v{d+3}, 0')

def h_dma_prep(a):
    a(f'v_lshrrev_b32 v8, 3, v1\nv_lshlrev_b32 v8, 12, v8\nv_bfe_u32 v9, v1, 4, 2\nv_lshlrev_b32 v9, 1, v9\nv_and_b32 v10, 7, v1\nv_xor_b32 v9, v9, v10\nv_lshl_add_u32 v8, v9, 4, v8')
    a(f's_lshl_b32 s60, {sRB}, 7\ns_lshl_b32 s61, {sW}, 15\ns_add_u32 s60, s60, s61\nv_add_u32 v8, s60, v8')
def h_dma(a, sc):
    a(f's_lshl_b32 s61, {sW}, 10\ns_mov_b32 s60, 0')
    for i in range(16):
        a(f's_mov_b32 m0, s61\ns_add_u32 s61, s61, 4096')
        a(f'buffer_load_dwordx4 v8, {rHT}, s60 offen {sc} lds\ns_add_u32 s60, s60, {32*4096}')

def gemm1_prep(a):
    a('v_lshrrev_b32 v16, 4, v1\nv_bfe_u32 v17, v1, 2, 2\nv_and_b32 v18, 3, v1\nv_and_b32 v19, 15, v1')
    a('v_lshrrev_b32 v20, 1, v17\nv_lshl_add_u32 v21, v16, 1, v20\nv_and_b32 v21, 3, v21')
    a('v_lshrrev_b32 v9, 2, v1\nv_lshlrev_b32 v9, 7, v9\nv_lshl_add_u32 v9, v21, 5, v9\nv_lshl_add_u32 v9, v18, 3, v9')
    a(f's_mul_i32 s60, {sRB}, {H1_RB}\ns_mul_i32 s61, {sJ}, 6144\ns_add_u32 s60, s60, s61')
    a(f's_lshl_b32 s61, {sW}, 10\ns_add_u32 s61, s61, s60\nv_lshl_add_u32 v12, v1, 4, s61')
    a(f's_lshl_b32 s61, {sC}, 10\ns_add_u32 s60, s60, s61\ns_lshl_b32 s61, {sH}, 9\ns_add_u32 s60, s60, s61\ns_add_u32 s60, s60, 4096')
    a(f'v_lshrrev_b32 v22, 1, v16\nv_lshlrev_b32 v22, 8, v22\nv_lshl_add_u32 v22, v19, 4, v22\nv_add_u32 v22, s60, v22')
    a(f's_mov_b32 s61, {H1_LT}\nv_and_b32 v23, 1, v16\nv_add_u32 v23, {sW}, v23')
    a('v_and_b32 v10, 3, v23\nv_mad_u32_u24 v10, v10, s61, v22\nv_add_u32 v23, 2, v23\nv_and_b32 v11, 3, v23\nv_mad_u32_u24 v11, v11, s61, v22')
    a(f'v_lshlrev_b32 v13, 4, v19\nv_add_u32 v13, {L_ST2}, v13')
    a(f'v_lshl_add_u32 v14, v16, 3, v17\nv_lshlrev_b32 v14, 7, v14\nv_xor_b32 v20, {sW}, v20\nv_lshl_add_u32 v14, v20, 5, v14\nv_lshl_add_u32 v14, v18, 3, v14')
    a(f's_lshl_b32 s60, {sJ}, 13\nv_add_u32 v14, s60, v14\nv_xor_b32 v15, 64, v14\nv_add_u32 v15, 512, v15')
    a('v_mov_b32 v49, 0\nv_mov_b32 v50, 0\nv_mov_b32 v51, 0')

RES = 136
def residual(a):
    for t in range(4): a(f'ds_read_b64_tr_b16 {q(RES+2*t,2)}, v{14+(t&1)} offset:{4096*(t>>1)}')

def gemm1(a, sc):
    ACC = (56, 68); BR = 80; NB = 6
    T1, T2 = 104, 116
    PK = 128
    def epi(it):
        acc = ACC[it & 1]; L = []
        pre = []
        if it == 0:
            pre += ['s_nop 1', 'v_permlane32_swap_b32 v52, v53', 'v_add_f32 v52, v52, v53', 'v_mov_b32 v53, v52', 'v_permlane16_swap_b32 v52, v53', 'v_add_f32 v52, v52, v53',
                    'v_mul_f32 v52, 0x3b000000, v52', 'v_mov_b32 v53, v52', 'v_permlane32_swap_b32 v52, v53',
                    'v_fma_f32 v53, -v52, v52, v53', 'v_max_f32 v53, 0, v53', 'v_cvt_pk_bf16_f32 v48, -v52, -v52',
                    'v_cvt_pk_bf16_f32 v53, v53, v53', 'v_lshlrev_b32 v53, 16, v53', 'v_add_f32 v53, 0x3727c5ac, v53',
                    'v_cvt_pk_bf16_f32 v53, v53, v53', 'v_lshlrev_b32 v53, 16, v53', 'v_sqrt_f32 v53, v53',
                    'v_cvt_pk_bf16_f32 v53, v53, v53', 'v_lshlrev_b32 v55, 16, v53', 'v_rcp_f32 v54, v55',
                    f'v_mul_f32 v54, {LOG2E | 0x80000000:#x}, v54',
                    f's_lshl_b32 s60, {sW}, 8', 'v_add_u32 v52, s60, v13', 'ds_write_b64 v52, v[54:55]', 'ds_write_b32 v52, v48 offset:8']
        else:
            pre += [f's_add_u32 s60, {sW}, {it}', 's_and_b32 s60, s60, 3', 's_lshl_b32 s60, s60, 8', 'v_add_u32 v52, s60, v13',
                    'ds_read_b32 v48, v52 offset:8', 'ds_read_b64 v[54:55], v52']
        cor = [f'v_mfma_f32_16x16x32_bf16 {q(acc+4*T)}, {q(36+4*T)}, v[48:51], {q(acc+4*T)}' for T in range(3)]
        for i in range(12): L.append(f'v_mul_f32 v{T1+i}, v{acc+i}, v54')
        for i in range(12): L.append(f'v_exp_f32 v{T1+i}, v{T1+i}')
        for i in range(12): L.append(f'v_fma_f32 v{T1+i}, v{T1+i}, v55, v55')
        for i in range(12): L.append(f'v_rcp_f32 v{T1+i}, v{T1+i}')
        for i in range(12): L.append(f'v_mul_f32 v{T1+i}, v{T1+i}, v{acc+i}')
        for i in range(4): L.append(f'v_cvt_pk_bf16_f32 v{PK+i}, v{T1+2*i}, v{T1+2*i+1}')
        L.append(f's_add_u32 s60, {sW}, {it}\ns_and_b32 s60, s60, 3\ns_mul_i32 s60, s60, {H1_LT}')
        L.append(f'buffer_store_dwordx4 {q(PK)}, v12, {rH1}, s60 offen {sc}')
        c0 = 132 + 2 * (it & 1)
        for i in range(2): L.append(f'v_cvt_pk_bf16_f32 v{c0+i}, v{T1+8+2*i}, v{T1+9+2*i}')
        if it & 1:
            L += ['v_permlane16_swap_b32 v132, v134', 'v_permlane16_swap_b32 v133, v135', f'buffer_store_dwordx4 v[132:135], v{10+(it>>1)}, {rH1}, 0 offen {sc}']
        return pre, cor, L
    seq = [(it, ks) for it in range(4) for ks in range(16)]
    def rd(n):
        it, ks = seq[n]; b = BR + 4 * (n % NB); ad = 6 + (it & 1)
        if ks == 0: a(f's_add_u32 s61, {sW}, {it}\ns_and_b32 s61, s61, 3\ns_lshl_b32 s61, s61, 5\nv_xor_b32 v{ad}, s61, v9')
        if it == 0 and ks % 4 == 0: a(f's_waitcnt vmcnt({12 - ks})\ns_barrier')
        a(f'ds_read_b64_tr_b16 {q(b,2)}, v{ad} offset:{4096*ks}\nds_read_b64_tr_b16 {q(b+2,2)}, v{ad} offset:{4096*ks+2048}')
    PF = NB - 2
    a('s_mov_b32 s64, 0x3f803f80')
    for n in range(PF): rd(n)
    fill = []
    for n, (it, ks) in enumerate(seq):
        if ks == 0 and it > 0:
            pre, cor, L = epi(it - 1)
            fill = pre + cor + L
            if it == 1: fill = pre + ['s_waitcnt lgkmcnt(0)\ns_barrier'] + cor + L
        b = BR + 4 * (n % NB)
        for T in range(3):
            a(f'v_mfma_f32_16x16x32_bf16 {q(ACC[it&1]+4*T)}, {q(12*ks+4*T,4,"a")}, {q(b)}, {"0" if ks == 0 else q(ACC[it&1]+4*T)}')
            if T == 0 and n + PF < 64: rd(n + PF)
            if it == 0:
                if T == 1:
                    for i in range(4): a(f'v_dot2_f32_bf16 v52, v{b+i}, s64, {"0" if (ks == 0 and i == 0) else "v52"}')
                if T == 2:
                    for i in range(4): a(f'v_dot2_f32_bf16 v53, v{b+i}, v{b+i}, {"0" if (ks == 0 and i == 0) else "v53"}')
                if ks == 15 and T == 2: residual(a)
            else:
                left = (16 - ks) * 3 - T
                k = -(-len(fill) // left)
                for _ in range(k):
                    if fill: a(fill.pop(0))
    pre, cor, L = epi(3)
    for x in pre + cor + L: a(x)

def W2(s, t): return q(144 + 16 * s + 4 * t) if s < 7 else q(192 + 16 * (s - 7) + 4 * t, 4, 'a')
def W2h(s, t, h): return q(144 + 16 * s + 4 * t + 2 * h, 2) if s < 7 else q(192 + 16 * (s - 7) + 4 * t + 2 * h, 2, 'a')
def w2_addr(a, r0):
    a(f'v_lshrrev_b32 v30, 3, v1\nv_and_b32 v31, 7, v1\ns_lshl_b32 s60, {sJ}, 7\nv_lshl_add_u32 v31, v31, 4, s60')
    a(f'v_lshl_add_u32 v{r0}, v30, 10, v31\nv_lshrrev_b32 v{r0+1}, 2, v30\nv_lshlrev_b32 v{r0+1}, 3, v{r0+1}\nv_and_b32 v30, 3, v30\nv_add_u32 v30, v30, v{r0+1}\nv_lshl_add_u32 v{r0+1}, v30, 10, v31')
    a(f's_lshl_b32 s66, {sW}, 15\ns_mul_i32 s67, {sC}, {192*1024}\ns_lshl_b32 s60, {sH}, 15\ns_add_u32 s67, s67, s60\ns_add_u32 s67, s67, {128*1024}')
    a(f's_add_u32 s68, s67, {3*384*1024}\ns_cmp_eq_u32 {sW}, 2\ns_cselect_b32 s68, {1344*1024}, s68')
def w2_loads(r0):
    L = []
    for s in range(11):
        for qq in range(4):
            if s < 7: o = f's_add_u32 s65, s66, {(192*s + 8*qq)*1024}'
            elif s < 10: o = f's_add_u32 s65, s67, {(384*(s-7) + (0,16,4,20)[qq])*1024}'
            else: o = f's_add_u32 s65, s68, {(0,16,4,20)[qq]*1024}'
            L.append(o + f'\nbuffer_load_dwordx4 {W2(s,qq)}, v{r0+(s>=7)}, {rW2}, s65 offen')
    return L
def w2_transpose(a):
    a(f's_lshl_b32 s60, {sW}, 12\ns_add_u32 s60, s60, {L_TR}')
    a('v_lshrrev_b32 v16, 3, v1\nv_lshrrev_b32 v17, 1, v16\nv_xor_b32 v17, v17, v16\nv_and_b32 v17, 1, v17\nv_lshrrev_b32 v18, 2, v16\nv_lshl_add_u32 v17, v18, 3, v17')
    a('v_and_b32 v18, 7, v1\nv_lshlrev_b32 v18, 1, v18\nv_xor_b32 v18, v18, v17\nv_lshlrev_b32 v18, 3, v18\nv_lshl_add_u32 v2, v16, 7, v18\nv_add_u32 v2, s60, v2\nv_xor_b32 v3, 8, v2')
    a('v_lshrrev_b32 v16, 2, v1\nv_lshrrev_b32 v17, 1, v16\nv_xor_b32 v17, v17, v16\nv_and_b32 v17, 1, v17\nv_bfe_u32 v18, v16, 2, 1\nv_lshl_add_u32 v17, v18, 3, v17')
    a('v_and_b32 v18, 3, v1\nv_lshlrev_b32 v18, 1, v18\nv_xor_b32 v18, v18, v17\nv_lshlrev_b32 v18, 3, v18\nv_lshl_add_u32 v4, v16, 7, v18\nv_add_u32 v4, s60, v4')
    a('v_xor_b32 v5, 8, v4\nv_xor_b32 v6, 64, v4\nv_xor_b32 v7, 0x48, v4')
    for s in range(11):
        for qq in range(4): a(f'ds_write_b64 v2, {W2h(s,qq,0)} offset:{1024*qq}\nds_write_b64 v3, {W2h(s,qq,1)} offset:{1024*qq}')
        for t in range(4): a(f'ds_read_b64_tr_b16 {W2h(s,t,0)}, v{4+t}\nds_read_b64_tr_b16 {W2h(s,t,1)}, v{4+t} offset:2048')
def gemm2_prep(a):
    a(f's_mul_i32 s60, {sRB}, {H1_RB}')
    for it in range(4):
        a(f's_add_u32 s61, {sW}, {it+1}\ns_and_b32 s61, s61, 3\ns_mul_i32 s64, s61, {H1_LT}\ns_add_u32 s64, s64, s60\nv_lshl_add_u32 v{8+it}, v1, 4, s64')
        if it < 3: a(f's_mul_i32 s64, s61, 12288\ns_add_u32 s64, s64, {4096*it}\nv_lshl_add_u32 v{12+it}, v1, 4, s64')
    a(f's_mul_i32 s64, {sW}, 12288\nv_lshl_add_u32 v15, v1, 4, s64')
    a(f's_lshl_b32 s70, {sW}, 10')
    for s in range(1, 7): a(f's_add_u32 s{70+s}, s70, {6144*s}')
    a(f's_mul_i32 s77, {sC}, 6144\ns_lshl_b32 s60, {sH}, 10\ns_add_u32 s77, s77, s60\ns_add_u32 s77, s77, 4096')
    for s in range(8, 11): a(f's_add_u32 s{70+s}, s77, {12288*(s-7)}')
    a(f's_cmp_eq_u32 {sW}, 3\ns_cselect_b32 s80, 0x40000000, s80')
    a(f's_lshl_b32 s60, {sRB}, 16\ns_lshl_b32 s61, {sW}, 14\ns_add_u32 s60, s60, s61\ns_lshl_b32 s61, {sJ}, 7\ns_add_u32 s60, s60, s61')
    a('v_and_b32 v16, 15, v1\nv_lshlrev_b32 v16, 10, v16\nv_lshrrev_b32 v17, 4, v1\nv_lshl_add_u32 v16, v17, 4, v16\nv_add_u32 v16, s60, v16')
def gemm2(a, sc):
    ACC = 24
    for it in range(4):
        for s in range(11): a(f'buffer_load_dwordx4 {q(44*it+4*s,4,"a")}, v{8+it}, {rH1}, s{70+s} offen {sc}')
    for it in range(4):
        for s in range(11):
            for t in range(4):
                a(f'v_mfma_f32_16x16x32_bf16 {q(ACC+16*it+4*t)}, {W2(s,t)}, {q(44*it+4*s,4,"a")}, {"0" if s == 0 else q(ACC+16*it+4*t)}')
            if it > 0 and 2 <= s < 6: a(f'ds_write_b128 v{12+it-1}, {q(ACC+16*(it-1)+4*(s-2))} offset:{1024*(s-2)}')
            if it == 3 and s >= 6:
                for i in range(2 * (s - 6), min(8, 2 * (s - 6) + 2)): a(f'v_lshlrev_b32 v{88+2*i}, 16, v{RES+i}\nv_and_b32 v{89+2*i}, 0xffff0000, v{RES+i}')
    a('s_waitcnt lgkmcnt(0)\ns_barrier')
    for i in range(12): a(f'ds_read_b128 {q(ACC+4*i)}, v15 offset:{1024*i}')
    for i in range(16): a(f'v_add_f32 v{88+i}, v{88+i}, v{ACC+48+i}')
    for k in range(3):
        for i in range(16): a(f'v_add_f32 v{88+i}, v{88+i}, v{ACC+16*k+i}')
    for k in range(2):
        for i in range(4): a(f'v_cvt_pk_bf16_f32 v{104+4*k+i}, v{88+8*k+2*i}, v{89+8*k+2*i}')
        a(f'global_store_dwordx4 v16, {q(104+4*k)}, {pOUT} offset:{64*k}')

def filler(a, L):
    def f():
        if L: a(L.pop(0))
    return f

def build_multi(dump=False):
    ks = []
    a = A(); prologue(a, 'K1_END'); a(f's_mov_b32 {sTAG}, 0'); p1_loads(a); p1_stats(a, ''); a('K1_END:\ns_endpgm'); ks.append(('k1_kernel', a, 64, 0))
    a = A(); a.nlab = 100; prologue(a, 'K2_END'); srds(a); p2_loads(a); p2_gather(a); p2_consts(a); kgen(a, lambda: None); x_prep(a); stats_load(a, ''); u_make(a)
    if dump:
        a(f's_mul_i32 s60, s2, {2*COPY_C}\ns_add_u32 s60, s60, {16<<20}\nv_lshl_add_u32 v4, v0, 4, s60\nv_lshlrev_b32 v5, 4, v0\nv_add_u32 v5, {L_COPY}, v5')
        for i in range(9):
            if i == 8: a('v_cmp_gt_u32 vcc, 32, v0\ns_and_saveexec_b64 s[60:61], vcc')
            a(f'ds_read_b128 v[8:11], v5 offset:{4096*i}\nglobal_store_dwordx4 v4, v[8:11], {pWS}\ns_waitcnt vmcnt(0)\nv_add_u32 v4, 4096, v4')
        a('s_mov_b64 exec, -1')
    conv(a, lambda: None); conv_epi(a, ''); a('K2_END:\ns_endpgm'); ks.append(('k2_kernel', a, 512, L_END))
    a = A(); a.nlab = 200; prologue(a, 'K3_END'); srds(a); w1_addr(a, 56)
    for x in w1_loads(56): a(x)
    h_dma_prep(a); w1_transpose(a); gemm1_prep(a); h_dma(a, ''); gemm1(a, ''); a('K3_END:\ns_endpgm'); ks.append(('k3_kernel', a, 512, L_END))
    a = A(); a.nlab = 300; prologue(a, 'K4_END'); srds(a); w2_addr(a, 56)
    for x in w2_loads(56): a(x)
    h_dma_prep(a); gemm1_prep(a); h_dma(a, ''); a('s_waitcnt vmcnt(0)\ns_barrier'); residual(a); w2_transpose(a); gemm2_prep(a); a('s_waitcnt lgkmcnt(0)\ns_barrier'); gemm2(a, ''); a('K4_END:\ns_endpgm'); ks.append(('k4_kernel', a, 512, L_END))
    return ks

def emit(ks):
    top = open('cdna_kernels/%s.s.ref' % NAME).read().split('; Override launch')[0]
    if len(ks) == 1:
        lines = [f'; @launch grid=(256,1,1) block=(256,1,1) lds={ks[0][3]}']
    else:
        lines = [f'; @launch kernel={k[0]} grid=(256,1,1) block=(256,1,1) lds={k[3]}' for k in ks]
    t = top + header(lines)
    seen = set()
    for n, a, v, lds in ks:
        if n in seen: continue
        seen.add(n)
        t += kstart(n) + finish(a.text()) + kdesc(n, v, 102, 256 if v > 256 else None)
    return t.rsplit('.text\n', 1)[0]

if __name__ == '__main__':
    mode = sys.argv[1] if len(sys.argv) > 1 else 'multi'
    out = sys.argv[2] if len(sys.argv) > 2 else 'k.s'
    if mode == 'multi': ks = build_multi()
    elif mode == 'multid': ks = build_multi(True)
    open(out, 'w').write(emit(ks))
```

```python
import sys
from asmlib import A, header, kstart, kdesc
from asmpass import finish
NAME = 'sequential_preLN__ssm_conv_s4d__dense_activation_silu__prompt'
WS_STATS = 64 << 10; WS_FL2 = 128 << 10; WS_FL3 = 160 << 10; WS_DBG = 12 << 20; WS_HT = 1 << 20; WS_H1 = 4 << 20
H1_LT = 48 * 1024; H1_RB = 4 * H1_LT
ROW = 544; KOP_C = 64 * ROW
L_TAB = 2 * KOP_C; TAB_C = 6176
L_COPY = L_TAB + 2 * TAB_C; CPS = 4160; COPY_C = 4 * CPS
L_U = L_COPY + 2 * COPY_C; U_C = 4576
L_X = L_U + 2 * U_C
L_END = L_X + 8192
L_TR = 65536; L_ST2 = L_TR + 16384
LOG2E = 0x3fb8aa3b; INV2PI = 0x3e22f983
sW, sP, sRB, sJ, sC, sH = 's3', 's50', 's51', 's52', 's53', 's54'
pX, pLA, pAI, pCR, pCI, pDT, pDS = 's[4:5]', 's[6:7]', 's[8:9]', 's[10:11]', 's[12:13]', 's[14:15]', 's[16:17]'
pOUT, pWS = 's[24:25]', 's[28:29]'
rW1, rW2, rHT, rH1 = 's[32:35]', 's[36:39]', 's[40:43]', 's[44:47]'
sTAG = 's55'; sDT = 's56'; sDK = 's57'; sXCC = 's81'; sLOC = 's81'; sTRY = 's69'
def q(b, n=4, k='v'): return f'{k}[{b}:{b+n-1}]'

def prologue(a, end, epoch=False):
    a(f's_cmp_ge_u32 s2, 256\ns_cbranch_scc1 {end}')
    a('s_load_dwordx16 s[4:19], s[0:1], 0\ns_load_dwordx8 s[20:27], s[0:1], 64\ns_load_dwordx2 s[28:29], s[0:1], 96')
    stamp_rt(a, 0); stamp(a, 1)
    a('v_and_b32 v1, 63, v0\nv_lshrrev_b32 v2, 6, v0\nv_readfirstlane_b32 s3, v2')
    a('s_and_b32 s48, s2, 7\ns_lshr_b32 s49, s2, 3\ns_lshl_b32 s50, s48, 5\ns_add_u32 s50, s50, s49')
    a('s_lshr_b32 s51, s49, 3\ns_lshl_b32 s52, s48, 2\ns_add_u32 s51, s51, s52\ns_and_b32 s52, s49, 7')
    a('s_lshr_b32 s53, s3, 1\ns_and_b32 s54, s3, 1')
    a('s_waitcnt lgkmcnt(0)')
    if epoch: a(f's_load_dword {sTAG}, {pWS}, 0')

STAMP = [False]
SREG = [82, 84, 86, 88, 90, 92, 94, 96, 98, 100, 18, 20, 22, 26, 30, 58]
def stamp(a, i):
    if STAMP[0]: a(f's_memtime s[{SREG[i]}:{SREG[i]+1}]')
def stamp_rt(a, i):
    if STAMP[0]: a(f's_memrealtime s[{SREG[i]}:{SREG[i]+1}]')
def stamp_out(a, k, extra=()):
    if not STAMP[0]: return
    a(f's_waitcnt vmcnt(0) lgkmcnt(0)')
    stamp(a, 14); stamp_rt(a, 15)
    a(f's_lshl_b32 s60, s2, 9\ns_lshl_b32 s61, s3, 7\ns_add_u32 s60, s60, s61\ns_add_u32 s60, s60, {WS_DBG + k * 131072}\nv_mov_b32 v2, s60\ns_waitcnt lgkmcnt(0)\ns_mov_b64 exec, 1')
    for i in range(16): a(f'v_mov_b32 v3, s{SREG[i]}\nglobal_store_dword v2, v3, {pWS} offset:{4*i}')
    for i, r in enumerate(extra): a(f'v_mov_b32 v3, {r}\nglobal_store_dword v2, v3, {pWS} offset:{64+4*i}')

def srds(a):
    a('s_mov_b32 s32, s20\ns_mov_b32 s33, s21\ns_mov_b32 s34, %d\ns_mov_b32 s35, 0x20000' % (512 * 2752))
    a('s_mov_b32 s36, s22\ns_mov_b32 s37, s23\ns_mov_b32 s38, %d\ns_mov_b32 s39, 0x20000' % (1376 * 1024))
    a(f's_add_u32 s40, s28, {WS_HT}\ns_addc_u32 s41, s29, 0\ns_mov_b32 s42, {2<<20}\ns_mov_b32 s43, 0x20000')
    a(f's_add_u32 s44, s28, {WS_H1}\ns_addc_u32 s45, s29, 0\ns_mov_b32 s46, {32*H1_RB}\ns_mov_b32 s47, 0x20000')

def p1_loads(a):
    a('s_lshl_b32 s60, s2, 13\ns_lshl_b32 s61, s3, 11\ns_add_u32 s60, s60, s61')
    a('v_lshl_add_u32 v2, v1, 4, s60')
    a(f'global_load_dwordx4 v[4:7], v2, {pX}\nglobal_load_dwordx4 v[8:11], v2, {pX} offset:1024')

def p1_stats(a, sc, pers=0):
    a('s_mov_b32 s60, 0x3f803f80')
    a('v_dot2_f32_bf16 v24, v4, s60, 0\nv_dot2_f32_bf16 v25, v8, s60, 0\nv_dot2_f32_bf16 v26, v4, v4, 0\nv_dot2_f32_bf16 v27, v8, v8, 0')
    for i in range(1, 4):
        a(f'v_dot2_f32_bf16 v24, v{4+i}, s60, v24\nv_dot2_f32_bf16 v25, v{8+i}, s60, v25')
        a(f'v_dot2_f32_bf16 v26, v{4+i}, v{4+i}, v26\nv_dot2_f32_bf16 v27, v{8+i}, v{8+i}, v27')
    a('v_permlane32_swap_b32 v24, v25\nv_permlane32_swap_b32 v26, v27')
    a('v_add_f32 v24, v24, v25\nv_add_f32 v26, v26, v27')
    a('v_permlane16_swap_b32 v24, v26\nv_add_f32 v24, v24, v26')
    for r in (8, 4, 2, 1):
        a(f'v_add_f32_dpp v24, v24, v24 row_ror:{r} row_mask:0xf bank_mask:0xf')
    a('v_mul_f32 v24, 0x3b000000, v24')
    a('v_mov_b32 v26, v24\nv_permlane16_swap_b32 v24, v26')
    a('v_fma_f32 v26, -v24, v24, v26\nv_max_f32 v26, 0, v26')
    a('v_cvt_pk_bf16_f32 v26, v26, v26\nv_lshlrev_b32 v26, 16, v26\nv_add_f32 v26, 0x3727c5ac, v26')
    a('v_cvt_pk_bf16_f32 v26, v26, v26\nv_lshlrev_b32 v26, 16, v26\nv_sqrt_f32 v26, v26')
    a('v_cvt_pk_bf16_f32 v26, v26, v26\nv_lshlrev_b32 v26, 16, v26\nv_rcp_f32 v28, v26')
    a('v_mov_b32 v25, v24\nv_mov_b32 v29, v28')
    a('v_permlane32_swap_b32 v24, v25\nv_permlane32_swap_b32 v28, v29')
    a(f'v_cvt_pk_bf16_f32 v30, v24, v25\nv_mov_b32 v31, {sTAG}')
    a(f's_lshl_b32 s60, s2, 7\ns_lshl_b32 s61, s3, 4\ns_add_u32 s60, s60, s61\ns_add_u32 s60, s60, {WS_STATS}\nv_mov_b32 v2, s60')
    if pers:
        a(f's_getreg_b32 {sXCC}, hwreg(HW_REG_XCC_ID, 0, 4)\ns_add_u32 s60, s60, 64\nv_writelane_b32 v2, s60, 1\nv_writelane_b32 v28, {sXCC}, 1')
        a(f's_cmp_eq_u32 {sW}, 0\ns_cselect_b64 exec, 3, 1\ns_waitcnt vmcnt({pers - 1})\nglobal_store_dwordx4 v2, v[28:31], {pWS} {sc}\ns_mov_b64 exec, -1')
    else:
        a(f's_mov_b64 exec, 1\nglobal_store_dwordx4 v2, v[28:31], {pWS} {sc}\ns_mov_b64 exec, -1')

GA = 64
def p2_loads(a):
    a(f's_lshl_b32 s60, {sP}, 9\nv_lshl_add_u32 v2, v0, 1, s60')
    for i, p in enumerate((pLA, pAI, pCR, pCI)): a(f'global_load_ushort v{12+i}, v2, {p}')
    a(f's_lshl_b32 s60, {sP}, 2\ns_load_dword {sDT}, {pDT}, s60\ns_load_dword {sDK}, {pDS}, s60')
def p2_gather(a):
    a(f's_lshl_b32 s60, {sP}, 2\nv_lshl_add_u32 v2, v0, 13, s60\nv_add_u32 v3, 4096, v2')
    for e in range(8): a(f'global_load_dword v{16+e}, v{2+(e>>2)}, {pX} offset:{1024*(e&3)}')

def p2_consts(a):
    a(f's_mul_i32 s62, {sC}, {TAB_C}\ns_add_u32 s62, s62, {L_TAB + 16}\ns_sub_u32 s63, s62, {4*0x3f80}')
    a('v_and_b32 v2, 127, v0\nv_lshlrev_b32 v3, 3, v2\nv_sub_u32 v3, 2047, v3\nv_cvt_f32_u32 v3, v3')
    a('s_mov_b32 s64, 4')
    import struct
    def fl(x): return '0x%08x' % struct.unpack('<I', struct.pack('<f', x))[0]
    for ps in range(2):
        for i in range(0, 12, 2):
            a(f'v_subrev_f32 v24, {fl(1024*ps + i)}, v3\nv_subrev_f32 v25, {fl(1024*ps + i + 1)}, v3\nv_cvt_pk_bf16_f32 v24, v24, v25')
            a(f'v_mov_b32 v26, s63') if (ps == 0 and i == 0) else None
            a(f'v_mad_u32_u16 v{GA+11*ps+i}, v24, 4, v26')
            if i + 1 < 11: a(f'v_mad_u32_u16 v{GA+11*ps+i+1}, v24, 4, v26 op_sel:[1,0,0,0]')
    a('v_cmp_eq_u32 vcc, 127, v2\ns_sub_u32 s60, s62, 4\ns_sub_u32 s61, s62, 8\nv_mov_b32 v24, s60\nv_mov_b32 v25, s61')
    a(f'v_cndmask_b32 v{GA+11+7}, v{GA+11+7}, v24, vcc')
    for i in (8, 9, 10): a(f'v_cndmask_b32 v{GA+11+i}, v{GA+11+i}, v25, vcc')
    a('v_and_b32 v27, 15, v1\nv_lshrrev_b32 v28, 4, v1')
    a('v_lshlrev_b32 v29, 4, v27\nv_lshl_add_u32 v29, v28, 2, v29\nv_cvt_f32_u32 v29, v29')
    a('v_add_f32 v30, 1.0, v29\nv_cvt_pk_bf16_f32 v30, v29, v30\nv_mad_u32_u16 v86, v30, 4, v26\nv_mad_u32_u16 v87, v30, 4, v26 op_sel:[1,0,0,0]')
    a('v_add_f32 v30, 2.0, v29\nv_add_f32 v31, 1.0, v30\nv_cvt_pk_bf16_f32 v30, v30, v31\nv_mad_u32_u16 v88, v30, 4, v26\nv_mad_u32_u16 v89, v30, 4, v26 op_sel:[1,0,0,0]')
    a('v_cmp_eq_u32 vcc, 0, v1\nv_cndmask_b32 v86, v86, v24, vcc')
    a(f's_add_u32 s60, s62, {4*(0x4480-0x3f80)}\nv_lshlrev_b32 v90, 8, v28\nv_lshl_add_u32 v90, v27, 3, v90\nv_add_u32 v90, s60, v90')
    a(f'v_lshlrev_b32 v30, 5, v27\nv_lshl_add_u32 v30, v28, 4, v30\nv_add_u32 v30, {4*(0x4380-0x3f80)}, v30')
    a(f'v_lshlrev_b32 v31, 4, v27\nv_lshl_add_u32 v31, v28, 8, v31\nv_add_u32 v31, {4*(0x4400-0x3f80) - 512}, v31')
    a('v_cmp_gt_u32 vcc, 2, v28\nv_cndmask_b32 v91, v31, v30, vcc\nv_add_u32 v91, s62, v91')
    a(f's_mul_i32 s60, {sC}, {KOP_C}\nv_mul_u32_u24 v92, {ROW}, v27\nv_lshl_add_u32 v92, v28, 4, v92\nv_add_u32 v92, s60, v92')
    a(f's_mul_i32 s60, {sC}, {COPY_C}\ns_add_u32 s60, s60, {L_COPY}\nv_lshl_add_u32 v93, v2, 4, s60')
    a('v_mov_b32 v32, 0\nv_mov_b32 v33, 0\nv_mov_b32 v34, 0\nv_mov_b32 v35, 0')
    a(f'v_lshrrev_b32 v30, 1, v2\nv_mul_u32_u24 v30, {CPS}, v30\nv_and_b32 v31, 1, v2\nv_lshl_add_u32 v30, v31, 4, v30\ns_add_u32 s60, s60, 4096\nv_add_u32 v30, s60, v30')
    a(f's_mul_i32 s61, {sC}, {U_C}\ns_add_u32 s61, s61, {L_U - 128}\nv_lshl_add_u32 v31, v2, 4, s61')
    a('v_cmp_gt_u32 vcc, 8, v2\nv_cndmask_b32 v30, v31, v30, vcc')
    a('s_sub_u32 s60, s62, 16\nv_mov_b32 v31, s60\nv_cmp_eq_u32 vcc, 38, v2\nv_cndmask_b32 v30, v30, v31, vcc')
    a('v_cmp_gt_u32 vcc, 39, v2\ns_and_saveexec_b64 s[60:61], vcc\nds_write_b128 v30, v[32:35]\ns_mov_b64 exec, s[60:61]')
    a(f's_mul_i32 s60, {sC}, {COPY_C}\ns_lshl_b32 s61, {sH}, 8\ns_sub_u32 s60, s60, s61\ns_add_u32 s60, s60, {L_COPY + 4104 - 192 - 512*7}')
    a(f'v_and_b32 v30, 3, v1\nv_mul_u32_u24 v136, {CPS}, v30\nv_bfe_u32 v30, v1, 2, 2\nv_lshl_add_u32 v30, v28, 1, v30\nv_lshlrev_b32 v30, 3, v30')
    a('v_sub_u32 v136, v136, v30\nv_add_u32 v136, s60, v136')
    a(f's_mul_i32 s60, {sC}, {U_C}\ns_sub_u32 s64, s60, s61\ns_add_u32 s64, s64, {L_U + 496 - 192}')
    a('v_lshlrev_b32 v137, 5, v27\nv_lshlrev_b32 v30, 4, v28\nv_sub_u32 v137, v137, v30\nv_add_u32 v137, s64, v137')
    a(f's_lshl_b32 s61, {sH}, 11\ns_add_u32 s60, s60, s61\ns_add_u32 s60, s60, {L_U + 480 - 32}')
    a(f's_lshl_b32 s64, {sC}, 12\ns_add_u32 s64, s64, s61\ns_add_u32 s64, s64, {L_X}')
    a('v_mov_b32 v30, s60\nv_mov_b32 v31, s64\nv_cmp_gt_u32 vcc, 2, v28\nv_cndmask_b32 v30, v30, v31, vcc')
    a('v_lshl_add_u32 v30, v27, 5, v30\nv_lshl_add_u32 v138, v28, 4, v30')
    a(f's_xor_b32 s60, {sW}, 1\ns_lshl_b32 s60, s60, 12\nv_lshl_add_u32 v139, v1, 4, s60\nv_lshlrev_b32 v140, 12, v0\nv_lshrrev_b32 v140, 6, v140\nv_and_b32 v140, 0x3000, v140\nv_lshl_add_u32 v140, v1, 4, v140')
    a('v_and_b32 v30, 1, v28\nv_lshlrev_b32 v30, 9, v30\nv_lshl_add_u32 v30, v27, 5, v30\nv_lshrrev_b32 v31, 1, v28\nv_lshl_add_u32 v141, v31, 4, v30')

def cmul(a, d, x, y):
    a(f'v_pk_mul_f32 v[62:63], {q(x,2)}, {q(y,2)} op_sel:[1,1] op_sel_hi:[1,0] neg_lo:[0,1]')
    a(f'v_pk_fma_f32 {q(d,2)}, {q(x,2)}, {q(y,2)}, v[62:63] op_sel:[0,0,0] op_sel_hi:[0,1,1]')

def kgen(a, fill, hook=None, st=3):
    a(f's_lshl_b32 s60, {sC}, 4\ns_lshr_b32 s61, {sDT}, s60\ns_lshl_b32 s61, s61, 16\ns_lshr_b32 {sDK}, {sDK}, s60\ns_and_b32 {sDK}, {sDK}, 0xffff')
    a(f'v_mov_b32 v24, {LOG2E:#x}\nv_mul_f32 v25, s61, v24\nv_exp_f32 v25, v25')
    a('v_lshlrev_b32 v12, 16, v12\nv_mul_f32 v12, v12, v24\nv_exp_f32 v12, v12')
    a('v_lshlrev_b32 v13, 16, v13\nv_lshlrev_b32 v14, 16, v14\nv_lshlrev_b32 v15, 16, v15')
    a('v_cvt_pk_bf16_f32 v25, v25, v12\nv_and_b32 v12, 0xffff0000, v25\nv_lshlrev_b32 v25, 16, v25')
    a('v_mul_f32 v12, v12, v25\nv_mul_f32 v13, v13, v25')
    a(f'v_mul_f32 v12, {LOG2E | 0x80000000:#x}, v12\nv_mul_f32 v13, {INV2PI:#x}, v13')
    a('v_mul_f32 v40, v14, v25\nv_mul_f32 v41, v15, v25\nv_add_f32 v40, v40, v40\nv_add_f32 v41, v41, v41')
    a(f's_mul_i32 s60, {sC}, {KOP_C}\ns_lshl_b32 s61, {sH}, 8\ns_add_u32 s60, s60, s61\ns_mov_b32 m0, s60')
    for d, mul, cj in ((24, None, 0), (26, '0x41800000', 1), (28, '0x43800000', 0)):
        if mul: a(f'v_mul_f32 v30, {mul}, v12\nv_mul_f32 v31, {mul}, v13')
        else: a('v_mov_b32 v30, v12\nv_mov_b32 v31, v13')
        a(f'v_exp_f32 v30, v30\nv_fract_f32 v31, v31\nv_cos_f32 v{d}, v31\nv_sin_f32 v{d+1}, v31')
        a(f'v_mul_f32 v{d}, v{d}, v30\nv_mul_f32 v{d+1}, {"-" if cj else ""}v{d+1}, v30')
    tmp = [94, 95, 96, 97]; ti = [0]
    def put(src, row):
        t = tmp[ti[0] & 3]; ti[0] += 1
        a(f'v_cvt_pk_bf16_f32 v{t}, v{src}, v{src+1}\nds_write_addtid_b32 v{t} offset:{row*ROW}')
    a(f'v_mov_b32 v98, 0x3f80\nds_write_addtid_b32 v98 offset:{48*ROW}')
    put(40, 0); put(26, 49)
    pr = 40; qr = 26
    for p in range(1, 16):
        pd = 40 + p if p % 2 == 0 else 56
        cmul(a, pd, pr, 24); pr = pd
        if p <= 14:
            qd = 58 + 2 * (p & 1)
            cmul(a, qd, qr, 26); qr = qd
        put(pd, p)
        if p <= 14: put(qd, 49 + p)
        fill()
    cmul(a, 30, 28, 28); cmul(a, 32, 30, 28); cmul(a, 34, 30, 30); fill()
    cmul(a, 36, 34, 28); cmul(a, 38, 34, 30); cmul(a, 24, 34, 32); cmul(a, 26, 34, 34); fill()
    jobs = [(40 + 2*i, 28, 16 + i) for i in range(8)] + [(40 + 4*i, 30, 24 + i) for i in range(4)] + [(40 + 4*i, 32, 28 + i) for i in range(4)]
    jobs += [(40 + 8*i, z, 32 + 2*qq + i) for qq, z in enumerate((34, 36, 38, 24)) for i in range(2)] + [(40, 26, 40)]
    for k, (x, z, row) in enumerate(jobs):
        d = 58 + 2 * (k & 1)
        cmul(a, d, x, z); put(d, row)
        if k % 2 == 1: fill()
    a('s_waitcnt lgkmcnt(0)\ns_barrier'); stamp(a, st)
    l1, l2 = a.label('KH1'), a.label('KJ')
    def tile(t, acc, withB):
        for k in range(8):
            if withB: a(f'ds_read_b128 {q(24+4*k)}, v92 offset:{48*ROW + 64*k}')
            a(f'ds_read_b128 {q(100+4*k)}, v92 offset:{16*t*ROW + 64*k}')
        for k in range(8):
            a(f'v_mfma_f32_16x16x32_bf16 {q(acc)}, {q(100+4*k)}, {q(24+4*k)}, {"0" if k == 0 else q(acc)}')
    a(f's_cmp_eq_u32 {sH}, 1\ns_cbranch_scc1 {l1}')
    tile(0, 56, True); tile(2, 60, False)
    for r in range(4): a(f'ds_write_b32 v{86+r}, v{56+r}')
    a('ds_write_b64 v90, v[60:61]\nds_write_b64 v90, v[62:63] offset:128')
    a(f's_waitcnt lgkmcnt(0)\ns_branch {l2}\n{l1}:')
    tile(1, 56, True)
    a('ds_write_b128 v91, v[56:59]')
    a(f's_waitcnt lgkmcnt(0)\n{l2}:\ns_barrier')
    if hook: hook()
    for ps in range(2):
        for i in range(11): a(f'ds_read_b32 v{24+12*ps+i}, v{GA+11*ps+i}')
        fill()
    for ps in range(2):
        for s in range(4):
            d = 100 + 16 * ps + 4 * s
            for k in range(4):
                b = 24 + 12 * ps + 3 - s + 2 * k
                a(f'v_cvt_pk_bf16_f32 v{d+k}, v{b}, v{b+1}')
            a(f'ds_write_b128 v93, {q(d)} offset:{s*CPS + 2048*ps}')
            fill()

def x_prep(a):
    a('s_mov_b32 s60, 0x05040100\ns_mov_b32 s61, 0x07060302')
    for k in range(4): a(f'v_perm_b32 v{56+k}, v{17+2*k}, v{16+2*k}, s60\nv_perm_b32 v{60+k}, v{17+2*k}, v{16+2*k}, s61')
    a(f'v_lshlrev_b32 v2, 4, v0\nds_write_b128 v2, v[56:59] offset:{L_X}' .replace(f'offset:{L_X}', 'offset:0').replace('v_lshlrev_b32 v2, 4, v0', f'v_lshlrev_b32 v2, 4, v0\nv_add_u32 v2, {L_X}, v2'))
    a('ds_write_b128 v2, v[60:63] offset:4096')
    for e in range(8): a(f'v_lshlrev_b32 v{88+e}, 16, v{16+e}\nv_and_b32 v{96+e}, 0xffff0000, v{16+e}')
    for i in range(32): a(f'v_mov_b32 v{24+i}, 0')
    a('v_and_b32 v120, 15, v1\nv_bfe_u32 v121, v1, 4, 1\nv_lshlrev_b32 v121, 3, v121\nv_sub_u32 v120, v120, v121')
    a(f'v_mov_b32 v121, {sDK}\nv_mov_b32 v122, 0x3f80\nv_cmp_gt_u32 vcc, 32, v1\nv_cndmask_b32 v121, v121, v122, vcc')
    a('v_and_b32 v122, 1, v120\nv_lshlrev_b32 v122, 4, v122\nv_lshlrev_b32 v121, v122, v121\nv_ashrrev_i32 v120, 1, v120')
    for k in range(4): a(f'v_cmp_eq_u32 vcc, {k}, v120\nv_cndmask_b32 v{132+k}, 0, v121, vcc')

SB = 144
def stats_addr(a):
    a(f'v_lshlrev_b32 v9, 7, v0\nv_add_u32 v9, {WS_STATS}, v9')
def stats_load(a, sc):
    for k in range(4): a(f'global_load_dwordx4 {q(SB+4*k)}, v9, {pWS} offset:{16*k} {sc}')

def u_make(a):
    for k in range(4):
        g = SB + 4 * k
        a(f'v_lshlrev_b32 v{g+3}, 16, v{g+2}\nv_and_b32 v{g+2}, 0xffff0000, v{g+2}')
        a(f'v_mul_f32 v{g+3}, -v{g+3}, v{g}\nv_mul_f32 v{g+2}, -v{g+2}, v{g+1}')
        for c in range(2):
            a(f'v_fma_f32 v{88+8*c+2*k}, v{88+8*c+2*k}, v{g}, v{g+3}\nv_fma_f32 v{89+8*c+2*k}, v{89+8*c+2*k}, v{g+1}, v{g+2}')
        for c in range(2):
            a(f'v_cvt_pk_bf16_f32 v{56+4*c+k}, v{88+8*c+2*k}, v{89+8*c+2*k}')
    a(f'ds_write_b128 v2, v[56:59] offset:0\nds_write_b128 v2, v[60:63] offset:{U_C}'.replace('v2,', 'v3,').replace('ds_write_b128 v3, v[56:59]', f'v_add_u32 v3, {L_U + 480 - L_X}, v2\nds_write_b128 v3, v[56:59]'.replace(str(L_U + 480 - L_X), hex((L_U + 480 - L_X) & 0xffffffff))))
    a('s_waitcnt lgkmcnt(0)\ns_barrier')

def conv(a, fill):
    ACC = 24; BS = (56, 88); AR = 120; NA = 3
    def rdA(rho, gam):
        slot = AR + 4 * ((rho * 8 + gam) % NA); off = 512 * (7 - gam) + 64 * (3 - rho)
        a(f'ds_read_b64 {q(slot,2)}, v136 offset:{off}\nds_read_b64 {q(slot+2,2)}, v136 offset:{off+8}')
    def rdB(rho, dl):
        a(f'ds_read_b128 {q(BS[rho&1]+4*dl)}, v137 offset:{512*dl + 64*(3-rho)}')
    rdA(0, 0)
    for dl in range(8): rdB(0, dl)
    for i in range(4): a(f'ds_read_b128 {q(BS[1]+4*i)}, v138 offset:{512*i}')
    rdA(0, 1)
    first = True
    for rho in range(4):
        for gam in range(8):
            nxt = rho * 8 + gam + 2
            slot = AR + 4 * ((rho * 8 + gam) % NA)
            for n in range(gam, 8):
                a(f'v_mfma_f32_16x16x32_bf16 {q(ACC+4*n)}, {q(slot)}, {q(BS[rho&1]+4*(n-gam))}, {q(ACC+4*n)}')
                if n == gam:
                    if nxt < 32: rdA(nxt // 8, nxt % 8)
                if n == gam + 1 and rho < 3 and not (rho == 0 and gam < 1):
                    for dl in {1: (0, 1), 2: (2, 3), 3: (4,), 4: (5,), 5: (6,), 6: (7,), 0: ()}[gam] : rdB(rho + 1, dl)
                if (n - gam) % 3 == 2: fill()
            if first:
                first = False
                l1, l2 = a.label('CB'), a.label('CJ')
                a(f's_waitcnt lgkmcnt(0)\ns_cmp_eq_u32 {sH}, 1\ns_cbranch_scc1 {l1}')
                for i in range(4): a(f'v_mfma_f32_16x16x32_bf16 {q(ACC+4*i)}, v[132:135], {q(BS[1]+4*i)}, {q(ACC+4*i)}')
                a(f's_branch {l2}\n{l1}:')
                for i in range(4): a(f'v_mfma_f32_16x16x32_bf16 {q(ACC+16+4*i)}, v[132:135], {q(BS[1]+4*i)}, {q(ACC+16+4*i)}')
                a(f'{l2}:')

def conv_epi(a, sc):
    ACC = 24
    l1, l2, l3, l4 = a.label('E1'), a.label('E2'), a.label('E3'), a.label('E4')
    a(f's_nop 7\ns_cmp_eq_u32 {sH}, 1\ns_cbranch_scc1 {l1}')
    for i in range(4): a(f'ds_write_b128 v139, {q(ACC+16+4*i)} offset:{1024*i}')
    a(f's_branch {l2}\n{l1}:')
    for i in range(4): a(f'ds_write_b128 v139, {q(ACC+4*i)} offset:{1024*i}')
    a(f'{l2}:\ns_waitcnt lgkmcnt(0)\ns_barrier')
    for i in range(4): a(f'ds_read_b128 {q(56+4*i)}, v140 offset:{1024*i}')
    a(f's_lshl_b32 s60, {sP}, 13\ns_lshl_b32 s61, {sW}, 11\ns_add_u32 s60, s60, s61')
    a(f's_waitcnt lgkmcnt(0)\ns_cbranch_scc1 {l3}'.replace(f's_cbranch_scc1 {l3}', f's_cmp_eq_u32 {sH}, 1\ns_cbranch_scc1 {l3}'))
    for i in range(16): a(f'v_add_f32 v{56+i}, v{56+i}, v{ACC+i}')
    a(f's_branch {l4}\n{l3}:')
    for i in range(16): a(f'v_add_f32 v{56+i}, v{56+i}, v{ACC+16+i}')
    a(f'{l4}:')
    for i in range(8): a(f'v_cvt_pk_bf16_f32 v{72+i}, v{56+2*i}, v{57+2*i}')
    for k in range(2):
        a(f'v_permlane16_swap_b32 v{72+4*k}, v{74+4*k}\nv_permlane16_swap_b32 v{73+4*k}, v{75+4*k}')
        a(f'buffer_store_dwordx4 {q(72+4*k)}, v141, {rHT}, s60 offen offset:{1024*k} {sc}')

def w1_addr(a, r0):
    a(f's_mul_i32 s60, {sJ}, 384\ns_lshl_b32 s61, {sW}, 6\ns_add_u32 s61, s61, s60')
    a(f's_add_u32 s60, s60, 256\ns_min_u32 s60, s60, 2688\ns_lshl_b32 s64, {sW}, 5\ns_add_u32 s60, s60, s64\ns_sub_u32 s60, s60, 64\ns_sub_u32 s60, s60, s61')
    for n in range(3):
        r = r0 + n
        a(f'v_add_u32 v30, {64*n}, v1\nv_mul_u32_u24 v31, 171, v30\nv_lshrrev_b32 v31, 10, v31\nv_mul_u32_u24 v{r}, 6, v31\nv_sub_u32 v30, v30, v{r}')
        a(f'v_mul_u32_u24 v{r}, 2752, v31\nv_lshl_add_u32 v{r}, v30, 4, v{r}\nv_add_u32 v{r}, s61, v{r}\nv_add_u32 v31, s60, v{r}')
        a(f'v_cmp_lt_u32 vcc, 3, v30\nv_cndmask_b32 v{r}, v{r}, v31, vcc')
def w1_loads(r0):
    L = []
    for ks in range(16):
        for n in range(3):
            L.append((f's_mov_b32 s65, {ks*88064}\n' if n == 0 else '') + f'buffer_load_dwordx4 {q(12*ks+4*n,4,"a")}, v{r0+n}, {rW1}, s65 offen')
    return L
def w1_transpose(a):
    a(f's_lshl_b32 s60, {sW}, 12\ns_add_u32 s60, s60, {L_TR}\nv_lshl_add_u32 v2, v1, 4, s60')
    a('v_lshrrev_b32 v3, 2, v1\nv_mul_u32_u24 v3, 96, v3\nv_and_b32 v4, 3, v1\nv_lshl_add_u32 v3, v4, 3, v3\nv_add_u32 v3, s60, v3')
    for i in range(4): a(f'v_mov_b32 v{4+i}, 0x3f803f80')
    def cs(ks):
        for T in range(3): a(f'v_mfma_f32_16x16x32_bf16 {q(24+4*T)}, v[4:7], {q(12*ks+4*T,4,"a")}, {"0" if ks == 0 else q(24+4*T)}')
    for ks in range(16):
        for n in range(3): a(f'ds_write_b128 v2, {q(12*ks+4*n,4,"a")} offset:{1024*n}')
        for T in range(3):
            a(f'ds_read_b64_tr_b16 {q(12*ks+4*T,2,"a")}, v3 offset:{32*T}\nds_read_b64_tr_b16 {q(12*ks+4*T+2,2,"a")}, v3 offset:{32*T+1536}')
        if ks: cs(ks - 1)
    cs(15)
    a('v_cmp_gt_u32 vcc, 16, v1')
    for T in range(3):
        s = 24 + 4 * T; d = 36 + 4 * T
        a(f'v_cvt_pk_bf16_f32 v{s+1}, v{s}, v{s}\nv_lshlrev_b32 v{s+1}, 16, v{s+1}\nv_sub_f32 v{s+2}, v{s}, v{s+1}\nv_cvt_pk_bf16_f32 v{s+1}, v{s+1}, v{s+2}')
        a(f'v_cndmask_b32 v{d}, 0, v{s+1}, vcc\nv_mov_b32 v{d+1}, 0\nv_mov_b32 v{d+2}, 0\nv_mov_b32 v{d+3}, 0')

def h_dma_prep(a):
    a(f'v_lshrrev_b32 v8, 3, v1\nv_lshlrev_b32 v8, 12, v8\nv_bfe_u32 v9, v1, 4, 2\nv_lshlrev_b32 v9, 1, v9\nv_and_b32 v10, 7, v1\nv_xor_b32 v9, v9, v10\nv_lshl_add_u32 v8, v9, 4, v8')
    a(f's_lshl_b32 s60, {sRB}, 7\ns_lshl_b32 s61, {sW}, 15\ns_add_u32 s60, s60, s61\nv_add_u32 v8, s60, v8')
def h_dma(a, sc):
    a(f's_lshl_b32 s61, {sW}, 10\ns_mov_b32 s60, 0')
    for i in range(16):
        a(f's_mov_b32 m0, s61\ns_add_u32 s61, s61, 4096')
        a(f'buffer_load_dwordx4 v8, {rHT}, s60 offen {sc} lds\ns_add_u32 s60, s60, {32*4096}')

def gemm1_prep(a):
    a('v_lshrrev_b32 v16, 4, v1\nv_bfe_u32 v17, v1, 2, 2\nv_and_b32 v18, 3, v1\nv_and_b32 v19, 15, v1')
    a('v_lshrrev_b32 v20, 1, v17\nv_lshl_add_u32 v21, v16, 1, v20\nv_and_b32 v21, 3, v21')
    a('v_lshrrev_b32 v9, 2, v1\nv_lshlrev_b32 v9, 7, v9\nv_lshl_add_u32 v9, v21, 5, v9\nv_lshl_add_u32 v9, v18, 3, v9')
    a(f's_mul_i32 s60, {sRB}, {H1_RB}\ns_mul_i32 s61, {sJ}, 6144\ns_add_u32 s60, s60, s61')
    a(f's_lshl_b32 s61, {sW}, 10\ns_add_u32 s61, s61, s60\nv_lshl_add_u32 v12, v1, 4, s61')
    a(f's_lshl_b32 s61, {sC}, 10\ns_add_u32 s60, s60, s61\ns_lshl_b32 s61, {sH}, 9\ns_add_u32 s60, s60, s61\ns_add_u32 s60, s60, 4096')
    a(f'v_lshrrev_b32 v22, 1, v16\nv_lshlrev_b32 v22, 8, v22\nv_lshl_add_u32 v22, v19, 4, v22\nv_add_u32 v22, s60, v22')
    a(f's_mov_b32 s61, {H1_LT}\nv_and_b32 v23, 1, v16\nv_add_u32 v23, {sW}, v23')
    a('v_and_b32 v10, 3, v23\nv_mad_u32_u24 v10, v10, s61, v22\nv_add_u32 v23, 2, v23\nv_and_b32 v11, 3, v23\nv_mad_u32_u24 v11, v11, s61, v22')
    a(f'v_lshlrev_b32 v13, 4, v19\nv_add_u32 v13, {L_ST2}, v13')
    a(f'v_lshl_add_u32 v14, v16, 3, v17\nv_lshlrev_b32 v14, 7, v14\nv_xor_b32 v20, {sW}, v20\nv_lshl_add_u32 v14, v20, 5, v14\nv_lshl_add_u32 v14, v18, 3, v14')
    a(f's_lshl_b32 s60, {sJ}, 13\nv_add_u32 v14, s60, v14\nv_xor_b32 v15, 64, v14\nv_add_u32 v15, 512, v15')
    a('v_mov_b32 v49, 0\nv_mov_b32 v50, 0\nv_mov_b32 v51, 0')

RES = 136
def residual(a):
    for t in range(4): a(f'ds_read_b64_tr_b16 {q(RES+2*t,2)}, v{14+(t&1)} offset:{4096*(t>>1)}')

def gemm1(a, sc, P=None):
    ACC = (56, 68); BR = 80; NB = 6
    T1, T2 = 104, 116
    PK = 128
    def h1store(st):
        if not P or P.get('s3') != 'dyn': return st + ' ' + sc
        l1, l2 = a.label('HS'), a.label('HR')
        P['stubs'].append(f'{l1}:\n{st} sc1\ns_nop 1\ns_branch {l2}')
        return f's_cbranch_vccnz {l1}\n{st}\n{l2}:'
    def epi(it):
        acc = ACC[it & 1]; L = []
        pre = []
        if it == 0:
            pre += ['s_nop 1', 'v_permlane32_swap_b32 v52, v53', 'v_add_f32 v52, v52, v53', 'v_mov_b32 v53, v52', 'v_permlane16_swap_b32 v52, v53', 'v_add_f32 v52, v52, v53',
                    'v_mul_f32 v52, 0x3b000000, v52', 'v_mov_b32 v53, v52', 'v_permlane32_swap_b32 v52, v53',
                    'v_fma_f32 v53, -v52, v52, v53', 'v_max_f32 v53, 0, v53', 'v_cvt_pk_bf16_f32 v48, -v52, -v52',
                    'v_cvt_pk_bf16_f32 v53, v53, v53', 'v_lshlrev_b32 v53, 16, v53', 'v_add_f32 v53, 0x3727c5ac, v53',
                    'v_cvt_pk_bf16_f32 v53, v53, v53', 'v_lshlrev_b32 v53, 16, v53', 'v_sqrt_f32 v53, v53',
                    'v_cvt_pk_bf16_f32 v53, v53, v53', 'v_lshlrev_b32 v55, 16, v53', 'v_rcp_f32 v54, v55',
                    f'v_mul_f32 v54, {LOG2E | 0x80000000:#x}, v54',
                    f's_lshl_b32 s60, {sW}, 8', 'v_add_u32 v52, s60, v13', 'ds_write_b64 v52, v[54:55]', 'ds_write_b32 v52, v48 offset:8']
        else:
            pre += [f's_add_u32 s60, {sW}, {it}', 's_and_b32 s60, s60, 3', 's_lshl_b32 s60, s60, 8', 'v_add_u32 v52, s60, v13',
                    'ds_read_b32 v48, v52 offset:8', 'ds_read_b64 v[54:55], v52']
        cor = [f'v_mfma_f32_16x16x32_bf16 {q(acc+4*T)}, {q(36+4*T)}, v[48:51], {q(acc+4*T)}' for T in range(3)]
        for i in range(12): L.append(f'v_mul_f32 v{T1+i}, v{acc+i}, v54')
        for i in range(12): L.append(f'v_exp_f32 v{T1+i}, v{T1+i}')
        for i in range(12): L.append(f'v_fma_f32 v{T1+i}, v{T1+i}, v55, v55')
        for i in range(12): L.append(f'v_rcp_f32 v{T1+i}, v{T1+i}')
        for i in range(12): L.append(f'v_mul_f32 v{T1+i}, v{T1+i}, v{acc+i}')
        for i in range(4): L.append(f'v_cvt_pk_bf16_f32 v{PK+i}, v{T1+2*i}, v{T1+2*i+1}')
        L.append(f's_add_u32 s60, {sW}, {it}\ns_and_b32 s60, s60, 3\ns_mul_i32 s60, s60, {H1_LT}')
        L.append(h1store(f'buffer_store_dwordx4 {q(PK)}, v12, {rH1}, s60 offen'))
        c0 = 132 + 2 * (it & 1)
        for i in range(2): L.append(f'v_cvt_pk_bf16_f32 v{c0+i}, v{T1+8+2*i}, v{T1+9+2*i}')
        if it & 1:
            L += ['v_permlane16_swap_b32 v132, v134', 'v_permlane16_swap_b32 v133, v135', h1store(f'buffer_store_dwordx4 v[132:135], v{10+(it>>1)}, {rH1}, 0 offen')]
        return pre, cor, L
    seq = [(it, ks) for it in range(4) for ks in range(16)]
    def rd(n):
        it, ks = seq[n]; b = BR + 4 * (n % NB); ad = 6 + (it & 1)
        if ks == 0: a(f's_add_u32 s61, {sW}, {it}\ns_and_b32 s61, s61, 3\ns_lshl_b32 s61, s61, 5\nv_xor_b32 v{ad}, s61, v9')
        if it == 0 and ks % 4 == 0: a(f's_waitcnt vmcnt({12 - ks})\ns_barrier')
        a(f'ds_read_b64_tr_b16 {q(b,2)}, v{ad} offset:{4096*ks}\nds_read_b64_tr_b16 {q(b+2,2)}, v{ad} offset:{4096*ks+2048}')
    PF = NB - 2
    a('s_mov_b32 s64, 0x3f803f80')
    for n in range(PF): rd(n)
    fill = []
    for n, (it, ks) in enumerate(seq):
        if ks == 0 and it in (1, 2): stamp(a, (9 if P else 4) + it)
        if ks == 0 and it > 0:
            pre, cor, L = epi(it - 1)
            fill = pre + cor + L
            if it == 1: fill = pre + ['s_waitcnt lgkmcnt(0)\ns_barrier'] + cor + L
            if P:
                if it == 1:
                    r, c = a.label('G1R'), a.label('G1C')
                    fill = pre + ['s_waitcnt lgkmcnt(0)\ns_barrier', 'ds_read_b32 v116, v18 offset:8'] + cor + L[:6] + [f'v_cmp_u_f32 s[62:63], v116, v116\ns_cmp_lg_u64 s[62:63], 0\ns_cbranch_scc1 {r}\n{c}:'] + L[6:]
                    P['stubs'].append(f'{r}:\ns_add_u32 {sTRY}, {sTRY}, 1\ns_cmp_gt_u32 {sTRY}, {P["bound"]}\ns_cbranch_scc1 {c}\ns_waitcnt vmcnt(0) lgkmcnt(0)\ns_branch {P["s2"]}')
                bg = P['bg'][15 * (it - 1):15 * it]
                st = 40 if it == 1 else 0
                m = []; k = 0
                for i, x in enumerate(fill):
                    m.append(x)
                    while i >= st and k < len(bg) and (k + 1) * (len(fill) - st) <= (i + 1 - st) * len(bg): m.append(bg[k]); k += 1
                fill = m + bg[k:]
        b = BR + 4 * (n % NB)
        for T in range(3):
            a(f'v_mfma_f32_16x16x32_bf16 {q(ACC[it&1]+4*T)}, {q(12*ks+4*T,4,"a")}, {q(b)}, {"0" if ks == 0 else q(ACC[it&1]+4*T)}')
            if T == 0 and n + PF < 64: rd(n + PF)
            if it == 0:
                if T == 1:
                    for i in range(4): a(f'v_dot2_f32_bf16 v52, v{b+i}, s64, {"0" if (ks == 0 and i == 0) else "v52"}')
                if T == 2:
                    for i in range(4): a(f'v_dot2_f32_bf16 v53, v{b+i}, v{b+i}, {"0" if (ks == 0 and i == 0) else "v53"}')
                if ks == 15 and T == 2: residual(a)
            else:
                left = (16 - ks) * 3 - T
                k = -(-len(fill) // left)
                for _ in range(k):
                    if fill: a(fill.pop(0))
    pre, cor, L = epi(3)
    for x in pre + cor + L: a(x)

def W2(s, t): return q(144 + 16 * s + 4 * t) if s < 7 else q(192 + 16 * (s - 7) + 4 * t, 4, 'a')
def W2h(s, t, h): return q(144 + 16 * s + 4 * t + 2 * h, 2) if s < 7 else q(192 + 16 * (s - 7) + 4 * t + 2 * h, 2, 'a')
def w2_addr(a, r0):
    a(f'v_lshrrev_b32 v30, 3, v1\nv_and_b32 v31, 7, v1\ns_lshl_b32 s60, {sJ}, 7\nv_lshl_add_u32 v31, v31, 4, s60')
    a(f'v_lshl_add_u32 v{r0}, v30, 10, v31\nv_lshrrev_b32 v{r0+1}, 2, v30\nv_lshlrev_b32 v{r0+1}, 3, v{r0+1}\nv_and_b32 v30, 3, v30\nv_add_u32 v30, v30, v{r0+1}\nv_lshl_add_u32 v{r0+1}, v30, 10, v31')
    a(f's_lshl_b32 s66, {sW}, 15\ns_mul_i32 s67, {sC}, {192*1024}\ns_lshl_b32 s60, {sH}, 15\ns_add_u32 s67, s67, s60\ns_add_u32 s67, s67, {128*1024}')
    a(f's_add_u32 s68, s67, {3*384*1024}\ns_cmp_eq_u32 {sW}, 2\ns_cselect_b32 s68, {1344*1024}, s68')
def w2_loads(r0):
    L = []
    for s in range(11):
        for qq in range(4):
            if s < 7: o = f's_add_u32 s65, s66, {(192*s + 8*qq)*1024}'
            elif s < 10: o = f's_add_u32 s65, s67, {(384*(s-7) + (0,16,4,20)[qq])*1024}'
            else: o = f's_add_u32 s65, s68, {(0,16,4,20)[qq]*1024}'
            L.append(o + f'\nbuffer_load_dwordx4 {W2(s,qq)}, v{r0+(s>=7)}, {rW2}, s65 offen')
    return L
def w2_transpose(a):
    a(f's_lshl_b32 s60, {sW}, 12\ns_add_u32 s60, s60, {L_TR}')
    a('v_lshrrev_b32 v16, 3, v1\nv_lshrrev_b32 v17, 1, v16\nv_xor_b32 v17, v17, v16\nv_and_b32 v17, 1, v17\nv_lshrrev_b32 v18, 2, v16\nv_lshl_add_u32 v17, v18, 3, v17')
    a('v_and_b32 v18, 7, v1\nv_lshlrev_b32 v18, 1, v18\nv_xor_b32 v18, v18, v17\nv_lshlrev_b32 v18, 3, v18\nv_lshl_add_u32 v2, v16, 7, v18\nv_add_u32 v2, s60, v2\nv_xor_b32 v3, 8, v2')
    a('v_lshrrev_b32 v16, 2, v1\nv_lshrrev_b32 v17, 1, v16\nv_xor_b32 v17, v17, v16\nv_and_b32 v17, 1, v17\nv_bfe_u32 v18, v16, 2, 1\nv_lshl_add_u32 v17, v18, 3, v17')
    a('v_and_b32 v18, 3, v1\nv_lshlrev_b32 v18, 1, v18\nv_xor_b32 v18, v18, v17\nv_lshlrev_b32 v18, 3, v18\nv_lshl_add_u32 v4, v16, 7, v18\nv_add_u32 v4, s60, v4')
    a('v_xor_b32 v5, 8, v4\nv_xor_b32 v6, 64, v4\nv_xor_b32 v7, 0x48, v4')
    for s in range(11):
        for qq in range(4): a(f'ds_write_b64 v2, {W2h(s,qq,0)} offset:{1024*qq}\nds_write_b64 v3, {W2h(s,qq,1)} offset:{1024*qq}')
        for t in range(4): a(f'ds_read_b64_tr_b16 {W2h(s,t,0)}, v{4+t}\nds_read_b64_tr_b16 {W2h(s,t,1)}, v{4+t} offset:2048')
def gemm2_prep(a):
    a(f's_mul_i32 s60, {sRB}, {H1_RB}')
    for it in range(4):
        a(f's_add_u32 s61, {sW}, {it+1}\ns_and_b32 s61, s61, 3\ns_mul_i32 s64, s61, {H1_LT}\ns_add_u32 s64, s64, s60\nv_lshl_add_u32 v{8+it}, v1, 4, s64')
        if it < 3: a(f's_mul_i32 s64, s61, 12288\ns_add_u32 s64, s64, {4096*it}\nv_lshl_add_u32 v{12+it}, v1, 4, s64')
    a(f's_mul_i32 s64, {sW}, 12288\nv_lshl_add_u32 v15, v1, 4, s64')
    a(f's_lshl_b32 s70, {sW}, 10')
    for s in range(1, 7): a(f's_add_u32 s{70+s}, s70, {6144*s}')
    a(f's_mul_i32 s77, {sC}, 6144\ns_lshl_b32 s60, {sH}, 10\ns_add_u32 s77, s77, s60\ns_add_u32 s77, s77, 4096')
    for s in range(8, 11): a(f's_add_u32 s{70+s}, s77, {12288*(s-7)}')
    a(f's_cmp_eq_u32 {sW}, 3\ns_cselect_b32 s80, 0x40000000, s80')
    a(f's_lshl_b32 s60, {sRB}, 16\ns_lshl_b32 s61, {sW}, 14\ns_add_u32 s60, s60, s61\ns_lshl_b32 s61, {sJ}, 7\ns_add_u32 s60, s60, s61')
    a('v_and_b32 v16, 15, v1\nv_lshlrev_b32 v16, 10, v16\nv_lshrrev_b32 v17, 4, v1\nv_lshl_add_u32 v16, v17, 4, v16\nv_add_u32 v16, s60, v16')
def gemm2(a, sc, P=None):
    ACC = 24
    for it in range(4):
        for s in range(11): a(f'buffer_load_dwordx4 {q(44*it+4*s,4,"a")}, v{8+it}, {rH1}, s{70+s} offen {sc}')
    lab = [a.label('G2P') for _ in range(4)]
    def check(it):
        r, c = a.label('G2R'), a.label('G2C')
        a(f'v_cmp_u_f32 vcc, v{ACC+16*it}, v{ACC+16*it}\ns_cbranch_vccnz {r}\n{c}:')
        P['stubs'].append(f'{r}:\ns_add_u32 {sTRY}, {sTRY}, 1\ns_cmp_gt_u32 {sTRY}, {P["bound"]}\ns_cbranch_scc1 {c}\n' +
            '\n'.join(f'buffer_load_dwordx4 {q(44*it+4*s,4,"a")}, v{8+it}, {rH1}, s{70+s} offen {sc}' for s in range(11)) + f'\ns_waitcnt vmcnt(0) lgkmcnt(0)\ns_branch {lab[it]}')
    for it in range(4):
        if P: a(f'{lab[it]}:')
        for s in range(11):
            for t in range(4):
                a(f'v_mfma_f32_16x16x32_bf16 {q(ACC+16*it+4*t)}, {W2(s,t)}, {q(44*it+4*s,4,"a")}, {"0" if s == 0 else q(ACC+16*it+4*t)}')
                if P and it > 0 and s == 1 and t == 1: check(it - 1)
            if it > 0 and 2 <= s < 6: a(f'ds_write_b128 v{12+it-1}, {q(ACC+16*(it-1)+4*(s-2))} offset:{1024*(s-2)}')
            if it == 3 and s >= 6:
                for i in range(2 * (s - 6), min(8, 2 * (s - 6) + 2)): a(f'v_lshlrev_b32 v{88+2*i}, 16, v{RES+i}\nv_and_b32 v{89+2*i}, 0xffff0000, v{RES+i}')
    if P: check(3)
    if not P: stamp(a, 5)
    a('s_waitcnt lgkmcnt(0)\ns_barrier'); stamp(a, 13 if P else 6)
    for i in range(12): a(f'ds_read_b128 {q(ACC+4*i)}, v15 offset:{1024*i}')
    for i in range(16): a(f'v_add_f32 v{88+i}, v{88+i}, v{ACC+48+i}')
    for k in range(3):
        for i in range(16): a(f'v_add_f32 v{88+i}, v{88+i}, v{ACC+16*k+i}')
    for k in range(2):
        for i in range(4): a(f'v_cvt_pk_bf16_f32 v{104+4*k+i}, v{88+8*k+2*i}, v{89+8*k+2*i}')
        a(f'global_store_dwordx4 v16, {q(104+4*k)}, {pOUT} offset:{64*k} {P["outsc"] if P else ""}')

def filler(a, L):
    def f():
        if L: a(L.pop(0))
    return f

def build_multi(dump=False):
    ks = []
    a = A(); prologue(a, 'K1_END'); a(f's_mov_b32 {sTAG}, 0'); stamp(a, 2); p1_loads(a); p1_stats(a, ''); stamp(a, 3); stamp_out(a, 0); a('K1_END:\ns_endpgm'); ks.append(('k1_kernel', a, 64, 0))
    a = A(); a.nlab = 100; prologue(a, 'K2_END'); srds(a); p2_loads(a); p2_gather(a); p2_consts(a); stamp(a, 2); kgen(a, lambda: None); stamp(a, 4); x_prep(a); stats_addr(a); stats_load(a, ''); u_make(a); stamp(a, 5)
    if dump:
        a(f's_mul_i32 s60, s2, {2*COPY_C}\ns_add_u32 s60, s60, {16<<20}\nv_lshl_add_u32 v4, v0, 4, s60\nv_lshlrev_b32 v5, 4, v0\nv_add_u32 v5, {L_COPY}, v5')
        for i in range(9):
            if i == 8: a('v_cmp_gt_u32 vcc, 32, v0\ns_and_saveexec_b64 s[60:61], vcc')
            a(f'ds_read_b128 v[8:11], v5 offset:{4096*i}\nglobal_store_dwordx4 v4, v[8:11], {pWS}\ns_waitcnt vmcnt(0)\nv_add_u32 v4, 4096, v4')
        a('s_mov_b64 exec, -1')
    conv(a, lambda: None); stamp(a, 6); conv_epi(a, ''); stamp(a, 7); stamp_out(a, 1); a('K2_END:\ns_endpgm'); ks.append(('k2_kernel', a, 512, L_END))
    a = A(); a.nlab = 200; prologue(a, 'K3_END'); srds(a); w1_addr(a, 56)
    for x in w1_loads(56): a(x)
    stamp(a, 2)
    h_dma_prep(a); w1_transpose(a); stamp(a, 3); gemm1_prep(a); h_dma(a, ''); stamp(a, 4); gemm1(a, ''); stamp(a, 7); stamp_out(a, 2); a('K3_END:\ns_endpgm'); ks.append(('k3_kernel', a, 512, L_END))
    a = A(); a.nlab = 300; prologue(a, 'K4_END'); srds(a); w2_addr(a, 56)
    for x in w2_loads(56): a(x)
    h_dma_prep(a); gemm1_prep(a); h_dma(a, ''); stamp(a, 2); a('s_waitcnt vmcnt(0)\ns_barrier'); stamp(a, 3); residual(a); w2_transpose(a); gemm2_prep(a); a('s_waitcnt lgkmcnt(0)\ns_barrier'); stamp(a, 4); gemm2(a, ''); stamp(a, 7); stamp_out(a, 3); a('K4_END:\ns_endpgm'); ks.append(('k4_kernel', a, 512, L_END))
    return ks

def build_pers(s3='dyn', outsc='', pref=True):
    P = dict(stubs=[], bound=20000, s3=s3, outsc=outsc, s2='S2_TRY')
    a = A(); prologue(a, 'K_END', epoch=True); srds(a)
    p1_loads(a); p2_loads(a)
    for i in range(4): a(f'v_mov_b32 v{32+i}, -1')
    a(f's_lshl_b32 s60, {sP}, 13\nv_lshlrev_b32 v2, 4, v0\nv_lshlrev_b32 v3, 4, v1')
    a(f'buffer_store_dwordx4 v[32:35], v2, {rHT}, s60 offen sc1\ns_add_u32 s60, s60, 4096\nbuffer_store_dwordx4 v[32:35], v2, {rHT}, s60 offen sc1')
    a(f's_mul_i32 s60, {sRB}, {H1_RB}\ns_mul_i32 s61, {sJ}, 6144\ns_add_u32 s60, s60, s61\ns_mul_i32 s61, {sW}, {H1_LT}\ns_add_u32 s60, s60, s61\ns_add_u32 s61, s60, 4096')
    for i in range(6): a(f'buffer_store_dwordx4 v[32:35], v3, {rH1}, s{60 + i // 4} offen offset:{1024 * (i & 3)} sc1')
    npf = 0
    if pref:
        a('s_lshr_b32 s60, s2, 3\ns_mul_i32 s60, s60, %d\nv_lshl_add_u32 v2, v0, 7, s60\nv_add_u32 v3, %d, v2\nv_cmp_gt_u32 vcc, 88, v0\nv_cndmask_b32 v3, -1, v3, vcc' % (344 * 128, 256 * 128))
        a(f'buffer_load_ubyte v142, v2, {rW1}, 0 offen\nbuffer_load_ubyte v142, v3, {rW1}, 0 offen\nbuffer_load_ubyte v143, v2, {rW2}, 0 offen\nbuffer_load_ubyte v143, v3, {rW2}, 0 offen')
        npf = 4
    p2_consts(a); stamp(a, 2)
    a(f's_add_u32 {sTAG}, {sTAG}, 1')
    p1_stats(a, 'sc1', pers=1 + npf); stamp(a, 3)
    a(f's_lshl_b32 s60, {sP}, 2\nv_lshl_add_u32 v10, v0, 13, s60\nv_add_u32 v11, 4096, v10')
    G = [f'global_load_dword v{16+e}, v{10+(e>>2)}, {pX} offset:{1024*(e&3)}' for e in range(8)]
    w1_addr(a, 4); stats_addr(a)
    a(f's_and_b32 s60, s2, 0xc7\ns_lshl_b32 s60, s60, 7\ns_add_u32 s60, s60, {WS_STATS + 64}\nv_and_b32 v8, 7, v1\nv_lshl_add_u32 v8, v8, 10, s60')
    cnt = [0]
    def gfill():
        cnt[0] += 1
        if cnt[0] % 2 == 0 and G: a(G.pop(0))
    def sload():
        stats_load(a, 'sc1'); a(f'global_load_dwordx4 {q(SB+16)}, v8, {pWS} sc1')
    kgen(a, gfill, sload, st=4); stamp(a, 5)
    x_prep(a)
    a(f's_mov_b32 {sTRY}, 0\nS1_CHK:')
    a(f'v_xor_b32 v120, {sTAG}, v{SB+3}')
    for k in range(1, 5): a(f'v_xor_b32 v121, {sTAG}, v{SB+4*k+3}\nv_or_b32 v120, v120, v121')
    a('v_cmp_ne_u32 vcc, 0, v120\ns_cbranch_vccnz S1_RETRY\nS1_OK:')
    P['stubs'].append(f'S1_RETRY:\ns_add_u32 {sTRY}, {sTRY}, 1\ns_cmp_gt_u32 {sTRY}, {P["bound"]}\ns_cbranch_scc1 S1_OK\n' +
        '\n'.join(f'global_load_dwordx4 {q(SB+4*k)}, v9, {pWS} offset:{16*k} sc1' for k in range(4)) + f'\nglobal_load_dwordx4 {q(SB+16)}, v8, {pWS} sc1\ns_waitcnt vmcnt(0)\ns_branch S1_CHK')
    a(f'v_cmp_ne_u32 s[48:49], {sXCC}, v{SB+16}')
    if STAMP[0]: a(f's_mov_b32 s57, {sTRY}')
    stamp(a, 6)
    W = w1_loads(4)
    for _ in range(12): a(W.pop(0))
    u_make(a)
    a(f's_or_b32 s60, s2, s3\ns_cbranch_scc0 EP_BUMP\nEP_DONE:')
    P['stubs'].append(f'EP_BUMP:\nv_mov_b32 v120, 0\nv_mov_b32 v121, {sTAG}\ns_mov_b64 exec, 1\nglobal_store_dword v120, v121, {pWS} sc1\ns_mov_b64 exec, -1\ns_branch EP_DONE')
    stamp(a, 7)
    conv(a, filler(a, W)); assert not W
    conv_epi(a, 'sc1'); stamp(a, 8)
    h_dma_prep(a); w1_transpose(a); gemm1_prep(a); w2_addr(a, 16)
    a(f'v_lshlrev_b32 v18, 4, v1\nv_add_u32 v18, {L_ST2}, v18\ns_mov_b64 vcc, s[48:49]\ns_mov_b32 {sTRY}, 0')
    P['bg'] = w2_loads(16)
    stamp(a, 9)
    a('s_waitcnt lgkmcnt(0)\nS2_TRY:\ns_barrier')
    h_dma(a, 'sc1'); gemm1(a, 'sc1', P); stamp(a, 12)
    if STAMP[0]: a(f's_mov_b32 s62, {sTRY}')
    w2_transpose(a); gemm2_prep(a); a(f's_mov_b32 {sTRY}, 0\ns_waitcnt lgkmcnt(0)\ns_barrier')
    gemm2(a, 'sc1', P)
    stamp_out(a, 0, ('s57', 's62', sTRY, 's48', sXCC))
    a('K_END:\ns_endpgm')
    for x in P['stubs']: a(x)
    return [(NAME + '_kernel', a, 512, L_END)]

def emit(ks):
    top = open('cdna_kernels/%s.s.ref' % NAME).read().split('; Override launch')[0]
    if len(ks) == 1:
        lines = [f'; @launch grid=(256,1,1) block=(256,1,1) lds={ks[0][3]}']
    else:
        lines = [f'; @launch kernel={k[0]} grid=(256,1,1) block=(256,1,1) lds={k[3]}' for k in ks]
    t = top + header(lines)
    seen = set()
    for n, a, v, lds in ks:
        if n in seen: continue
        seen.add(n)
        t += kstart(n) + finish(a.text()) + kdesc(n, v, 102, 256 if v > 256 else None)
    return t.rsplit('.text\n', 1)[0]

if __name__ == '__main__':
    mode = sys.argv[1] if len(sys.argv) > 1 else 'multi'
    out = sys.argv[2] if len(sys.argv) > 2 else 'k.s'
    if 'stamp' in sys.argv: STAMP[0] = True
    if mode == 'multi': ks = build_multi()
    elif mode == 'multid': ks = build_multi(True)
    elif mode == 'pers':
        kw = dict(x.split('=') for x in sys.argv[3:] if '=' in x)
        if 'pref' in kw: kw['pref'] = int(kw['pref'])
        ks = build_pers(**kw)
    open(out, 'w').write(emit(ks))
```
